```python
import torch

def _softmax(x, axis=-1):
    return torch.softmax(x, dim=axis)
def _gelu(x):
    return torch.nn.functional.gelu(x, approximate="tanh")
def _silu(x):
    return torch.nn.functional.silu(x)
def _sigmoid(x):
    return torch.sigmoid(x)
def _layernorm(x, axis=-1, eps=1e-5):
    m = x.mean(dim=axis, keepdim=True)
    v = x.var(dim=axis, keepdim=True, unbiased=False)
    return (x - m) / torch.sqrt(v + eps)
def _scatter_add(tgt, idx, src, axis=0):
    return tgt.clone().index_add_(axis, idx, src)
def _segment_sum(src, seg, n):
    out = torch.zeros((n,) + src.shape[1:], dtype=src.dtype)
    return out.index_add_(0, seg, src)
def _pad(x, pw):
    flat = tuple(v for pair in reversed(pw) for v in pair)
    return torch.nn.functional.pad(x, flat)

kernel_name = 'parallel_sum__softmax_full_mha__dense_activation_gelu__prompt'

def setup_inputs():

    _w = (lambda a: (lambda t: t.to(torch.bfloat16) if t.is_floating_point() else t)(torch.as_tensor(a)))
    def _A_setup():
        B, S, D = 1, 2048, 512
        return {
            "x": _w((lambda *s: torch.randn(*s, dtype=torch.bfloat16) * 0.05)(B, S, D)),
            "wqkv": _w((lambda *s: torch.randn(*s, dtype=torch.bfloat16) * 0.05)(D, 3 * D)),
            "wo": _w((lambda *s: torch.randn(*s, dtype=torch.bfloat16) * 0.05)(D, D)),
        }
    _A_in = _A_setup()

    def _B_setup():
        B, S, D, F = 1, 2048, 512, 1376
        return {
            "x": _w((lambda *s: torch.randn(*s, dtype=torch.bfloat16) * 0.05)(B, S, D)),
            "w1": _w((lambda *s: torch.randn(*s, dtype=torch.bfloat16) * 0.8)(D, F) * (D ** -0.5)),
            "b1": _w((lambda *s: torch.randn(*s, dtype=torch.bfloat16) * 12.8)(F) * 0.01),
            "w2": _w((lambda *s: torch.randn(*s, dtype=torch.bfloat16) * 0.8)(F, D) * (F ** -0.5)),
            "b2": _w((lambda *s: torch.randn(*s, dtype=torch.bfloat16) * 12.8)(D) * 0.01),
        }
    _B_in = _B_setup()

    return {
        "A_x": _A_in["x"],
        "A_wqkv": _A_in["wqkv"],
        "A_wo": _A_in["wo"],
        "B_x": _B_in["x"],
        "B_w1": _B_in["w1"],
        "B_b1": _B_in["b1"],
        "B_w2": _B_in["w2"],
        "B_b2": _B_in["b2"],
    }

def reference(A_x, A_wqkv, A_wo, B_x, B_w1, B_b1, B_w2, B_b2):
    def _A_ref(x, wqkv, wo):
        B, S, D = x.shape
        H = 32; Dh = D // H
        qkv = (lambda x, *d: x.permute(*d))((x @ wqkv).reshape(B, S, 3, H, Dh), 2, 0, 3, 1, 4)
        q, k, v = qkv[0], qkv[1], qkv[2]
        scale = Dh ** -0.5
        scores = torch.einsum("bhqd,bhkd->bhqk", q, k) * scale
        p = _softmax(scores, axis=-1)
        o = torch.einsum("bhqk,bhkd->bhqd", p, v)
        return (lambda x, *d: x.permute(*d))(o, 0, 2, 1, 3).reshape(B, S, D) @ wo

    def _B_ref(x, w1, b1, w2, b2):
        h = torch.einsum("bsd,df->bsf", x, w1) + b1
        h = _gelu(h)
        return torch.einsum("bsf,fd->bsd", h, w2) + b2

    x = A_x
    xn = _layernorm(x, axis=-1)
    return x + _A_ref(xn, A_wqkv, A_wo) + _B_ref(xn, B_w1, B_b1, B_w2, B_b2)
```

```python
class Asm:
    def __init__(self):
        self.lines = []
        self.uid = 0
    def __call__(self, s):
        for ln in s.strip("\n").split("\n"):
            self.lines.append(ln.strip() if not ln.strip().endswith(":") else ln.strip())
    def label(self, base):
        self.uid += 1
        return f"L_{base}_{self.uid}"
    def text(self):
        out = []
        for l in self.lines:
            if l.endswith(":") or l.startswith("."):
                out.append(l)
            else:
                out.append("    " + l)
        return "\n".join(out) + "\n"

def vr(b, n=1):
    return f"v{b}" if n == 1 else f"v[{b}:{b+n-1}]"
def sr(b, n=1):
    return f"s{b}" if n == 1 else f"s[{b}:{b+n-1}]"

class Regs:
    def __init__(self, start=0, limit=256):
        self.n = start; self.limit = limit; self.hi = start
    def alloc(self, n=1, align=1):
        if n >= 2 and align < 2: align = 2
        self.n = (self.n + align - 1) // align * align
        r = self.n; self.n += n
        assert self.n <= self.limit, f"out of regs {self.n}"
        self.hi = max(self.hi, self.n)
        return r
    def mark(self): return self.n
    def reset(self, m): self.n = m

def kernel_desc(name, vgpr, sgpr=102):
    acc = (vgpr + 3) // 4 * 4
    return f""".amdhsa_kernel {name}
  .amdhsa_next_free_vgpr {vgpr}
  .amdhsa_next_free_sgpr {sgpr}
  .amdhsa_accum_offset {acc}
  .amdhsa_group_segment_fixed_size 0
  .amdhsa_kernarg_size 88
  .amdhsa_user_sgpr_count 2
  .amdhsa_user_sgpr_kernarg_segment_ptr 1
  .amdhsa_system_sgpr_workgroup_id_x 1
  .amdhsa_float_denorm_mode_32 3
  .amdhsa_float_denorm_mode_16_64 3
.end_amdhsa_kernel
"""
```

```python
import sys
from asmlib import *

WS_Q  = 0
WS_KV = 2 << 20
WS_AH = 8 << 20
WS_TS = 0xF80000
WS_SIZE = 16 << 20
NKS = 118
LOG2E = 1.4426950408889634
import struct
def f2u(x): return struct.unpack("<I", struct.pack("<f", x))[0]

sWG = 2
sX, sW, sWS, sB1 = 8, 12, 16, 20
sW2, sWO, sOUT, sDBG = 24, 28, 32, 84
sARG = 36
sWAVE, sRB, sRT = 58, 59, 61
sT = 64
sTS = 88

class Cfg:
    def __init__(self, **kw):
        self.fused = False; self.ts = False; self.nostats = False; self.nomm = False; self.nord = False; self.clk = False; self.nostag = False; self.nodma = False; self.nobar = False; self.waitall = False; self.trace = False; self.hprio = 0; self.nohrd = False; self.cprio = 0; self.nocomp = False; self.rot = 7; self.m16 = False; self.pf = 0
        self.__dict__.update(kw)
        self.sc = "sc1" if self.fused else ""

def srd(a, d, lo, size):
    a(f"s_mov_b32 s{d}, s{lo}\ns_mov_b32 s{d+1}, s{lo+1}\ns_mov_b32 s{d+2}, {size:#x}\ns_mov_b32 s{d+3}, 0x20000")

def stamp(a, cfg, i):
    if cfg.ts: a(f"{'s_memtime' if cfg.clk else 's_memrealtime'} s[{sTS+2*i}:{sTS+2*i+1}]")

def stamps_out(a, cfg, n, base):
    if not cfg.ts: return
    a("s_waitcnt lgkmcnt(0)")
    for i in range(n): a(f"v_writelane_b32 v1, s{sTS+2*i}, {i}")
    a(f"""s_lshl_b32 s{sT}, s{sWG}, 3
s_add_u32 s{sT}, s{sT}, s{sWAVE}
s_lshl_b32 s{sT}, s{sT}, 5
s_add_u32 s{sT}, s{sT}, {WS_TS + base:#x}
v_mbcnt_lo_u32_b32 v2, -1, 0
v_lshlrev_b32 v2, 2, v2
s_mov_b64 exec, 0xff
buffer_store_dword v1, v2, s[{sWS}:{sWS+3}], s{sT} offen
s_mov_b64 exec, -1""")

sTRI = 100
def tr_init(a, cfg):
    if cfg.trace: a(f"s_mov_b32 s{sTRI}, 0\nv_mov_b32 v250, 0")
def tr(a, cfg):
    if cfg.trace:
        a(f"s_memtime s[98:99]\ns_waitcnt lgkmcnt(0)\ns_mov_b32 s101, m0\ns_mov_b32 m0, s{sTRI}\ns_add_u32 s{sTRI}, s{sTRI}, 1\nv_writelane_b32 v250, s98, m0\ns_mov_b32 m0, s101")
def tr_out(a, cfg):
    if cfg.trace:
        a(f"""s_lshl_b32 s{sT}, s{sWG}, 3
s_add_u32 s{sT}, s{sT}, s{sWAVE}
s_lshl_b32 s{sT}, s{sT}, 8
s_add_u32 s{sT}, s{sT}, {0x600000}
v_mbcnt_lo_u32_b32 v2, -1, 0
v_mbcnt_hi_u32_b32 v2, -1, v2
v_lshlrev_b32 v2, 2, v2
buffer_store_dword v250, v2, s[{sWS}:{sWS+3}], s{sT} offen""")

def prologue(a, cfg, endlabel):
    a(f"""s_cmp_ge_u32 s{sWG}, 256
s_cbranch_scc1 {endlabel}
s_load_dwordx16 s[{sARG}:{sARG+15}], s[0:1], 0
s_load_dwordx4 s[{sARG+16}:{sARG+19}], s[0:1], 64
s_load_dwordx2 s[{sARG+20}:{sARG+21}], s[0:1], 80""")
    stamp(a, cfg, 0)
    a(f"""v_lshrrev_b32 v2, 6, v0
v_and_b32 v1, 63, v0
v_readfirstlane_b32 s{sWAVE}, v2""")
    tr_init(a, cfg); tr(a, cfg)

STG = 40960
NST = 3
SCR = NST * STG
BFM, AFM, RSM, VSM = SCR, SCR + 4096, SCR + 7168, SCR + 8192
sKIND, sNB, sHW = 60, 63, 62
def phase1(a, cfg):
    T = sT
    vL = 1
    P = lambda r: vr(r, 2)
    Lhelp = a.label("p1help"); Ldone = a.label("p1done")
    a(f"""s_and_b32 s{T}, s{sWG}, 3
s_lshl_b32 s{T}, s{T}, 2
s_bfe_u32 s{T+1}, s{sWG}, 0x20003
s_add_u32 s{sRB}, s{T}, s{T+1}
s_lshr_b32 s{sNB}, s{sWG}, 5
s_bfe_u32 s{sKIND}, s{sWG}, 0x10002
s_and_b32 s{sHW}, s{sWAVE}, 3
s_cmp_lt_u32 s{sWAVE}, 4
s_cbranch_scc1 {Lhelp}_c""")
    R = Regs(2)
    t0, t1, t2, t3 = R.alloc(), R.alloc(), R.alloc(), R.alloc()
    vXg = [R.alloc(), R.alloc()]
    vWg = [R.alloc() for _ in range(3)]
    vXa = [R.alloc() for _ in range(4)]
    vWa = [R.alloc() for _ in range(3)]
    vB1 = [R.alloc() for _ in range(3)]
    vOne = R.alloc(2, 2)
    vSt = R.alloc(4, 4); vTm = R.alloc(4, 4)
    vCs = [R.alloc(4, 4) for _ in range(3)]
    FX = R.alloc(16, 4); FW = R.alloc(24, 4)
    sXoff, sWoff, sPitch, sM0x, sM0w, sCh, sCnt, sDlt, sKrow, sStage, sP8 = [T + 8 + i for i in range(11)]
    a(f"""s_lshl_b32 s{T}, s{sRB}, 1
s_add_u32 s{sCh}, s{T}, s{sNB}
s_and_b32 s{sCh}, s{sCh}, {cfg.rot}
v_lshrrev_b32 v{t0}, 3, v{vL}
v_lshrrev_b32 v{t1}, 4, v{vL}
v_and_b32 v{t2}, 7, v{vL}
v_xor_b32 v{t2}, v{t2}, v{t1}
v_lshlrev_b32 v{t2}, 4, v{t2}
v_lshl_add_u32 v{vXg[0]}, v{t0}, 10, v{t2}
v_xor_b32 v{vXg[1]}, 64, v{vXg[0]}
v_add_u32 v{vXg[1]}, 0x2000, v{vXg[1]}
s_lshl_b32 s{sXoff}, s{sRB}, 17
s_lshl_b32 s{T}, s{sHW}, 15
s_add_u32 s{sXoff}, s{sXoff}, s{T}
s_lshl_b32 s{sM0x}, s{sHW}, 12
s_movk_i32 s{sPitch}, 2752
s_cmp_eq_u32 s{sKIND}, 0
s_cmov_b32 s{sPitch}, 3072""")
    for i in range(3):
        a(f"""v_add_u32 v{t0}, {64*i}, v{vL}
v_mul_u32_u24 v{t1}, 0x2ab, v{t0}
v_lshrrev_b32 v{t1}, 14, v{t1}
v_mul_u32_u24 v{t2}, 24, v{t1}
v_sub_u32 v{t2}, v{t0}, v{t2}
v_lshlrev_b32 v{t3}, 1, v{t1}
v_and_b32 v{t3}, 4, v{t3}
v_xor_b32 v{t2}, v{t2}, v{t3}
v_lshlrev_b32 v{t2}, 4, v{t2}
v_mad_u32_u24 v{vWg[i]}, v{t1}, s{sPitch}, v{t2}""")
    a(f"""s_mul_i32 s{sWoff}, s{sNB}, 384
s_lshl_b32 s{T}, s{sHW}, 4
s_mul_i32 s{T}, s{T}, s{sPitch}
s_add_u32 s{sWoff}, s{sWoff}, s{T}
s_lshl_b32 s{sKrow}, s{sPitch}, 6
s_lshl_b32 s{sP8}, s{sPitch}, 3
s_mul_i32 s{sM0w}, s{sHW}, 6144
s_add_u32 s{sM0w}, s{sM0w}, 16384
s_mov_b32 s{sX+2}, {2048*1024}
s_mov_b32 s{sX+3}, 0x20000
s_lshl_b32 s{sW+2}, s{sPitch}, 9
s_mov_b32 s{sW+3}, 0x20000
s_mov_b32 s{sStage}, 0
s_mov_b32 s{sCnt}, 0
s_cmp_eq_u32 s{sKIND}, 0
s_waitcnt lgkmcnt(0)
s_mov_b32 s{sX}, s{sARG}
s_mov_b32 s{sX+1}, s{sARG+1}
s_cselect_b32 s{sW}, s{sARG+2}, s{sARG+8}
s_cselect_b32 s{sW+1}, s{sARG+3}, s{sARG+9}""")
    def dma_groups():
        g = []
        X = f"s[{sX}:{sX+3}]"; W = f"s[{sW}:{sW+3}]"
        g.append(f"s_lshl_b32 s{T}, s{sCh}, 7\ns_add_u32 s{T}, s{T}, s{sXoff}\ns_add_u32 m0, s{sM0x}, s{sStage}\ns_mul_i32 s{T+1}, s{sCh}, s{sKrow}\nbuffer_load_dwordx4 v{vXg[0]}, {X}, s{T} offen lds")
        g.append(f"s_add_u32 m0, m0, 1024\ns_add_u32 s{T+1}, s{T+1}, s{sWoff}\nbuffer_load_dwordx4 v{vXg[1]}, {X}, s{T} offen lds")
        g.append(f"s_add_u32 m0, m0, 1024\ns_add_u32 s{T}, s{T}, 0x4000\nbuffer_load_dwordx4 v{vXg[0]}, {X}, s{T} offen lds")
        g.append(f"s_add_u32 m0, m0, 1024\ns_add_u32 s{sCh}, s{sCh}, 1\nbuffer_load_dwordx4 v{vXg[1]}, {X}, s{T} offen lds")
        g.append(f"s_add_u32 m0, s{sM0w}, s{sStage}\ns_and_b32 s{sCh}, s{sCh}, 7\nbuffer_load_dwordx4 v{vWg[0]}, {W}, s{T+1} offen lds")
        for i in range(1, 6):
            mid = f"s_add_u32 s{T+1}, s{T+1}, s{sP8}" if i == 3 else "s_nop 0"
            g.append(f"s_add_u32 m0, m0, 1024\n{mid}\nbuffer_load_dwordx4 v{vWg[i % 3]}, {W}, s{T+1} offen lds")
        return g
    Lini = a.label("p1ini")
    a(f"{Lini}:")
    for g in dma_groups(): a(g)
    a(f"""s_add_u32 s{sStage}, s{sStage}, {STG}
s_cmp_eq_u32 s{sStage}, {STG}
s_cbranch_scc1 {Lini}""")
    stamp(a, cfg, 1)
    a(f"""s_mov_b32 s{sB1}, s{sARG+10}
s_mov_b32 s{sB1+1}, s{sARG+11}
s_mul_i32 s{sB1+2}, s{sKIND}, 2752
s_mov_b32 s{sB1+3}, 0x20000
s_mul_i32 s{T}, s{sNB}, 384
s_mul_i32 s{T+1}, s{sHW}, 96
s_add_u32 s{T}, s{T}, s{T+1}
v_and_b32 v{t0}, 15, v{vL}
v_lshlrev_b32 v{t0}, 1, v{t0}""")
    for j in range(3):
        a(f"buffer_load_ushort v{vB1[j]}, v{t0}, s[{sB1}:{sB1+3}], s{T} offen offset:{32*j}")
    a(f"""v_and_b32 v{t0}, 31, v{vL}
v_lshrrev_b32 v{t1}, 5, v{vL}
v_bfe_u32 v{t2}, v{vL}, 1, 3
v_xor_b32 v{t2}, v{t2}, v{t1}
v_lshlrev_b32 v{t2}, 4, v{t2}
v_lshl_add_u32 v{t2}, v{t0}, 7, v{t2}
v_add_u32 v{vXa[0]}, s{sM0x}, v{t2}""")
    for j in range(1, 4): a(f"v_xor_b32 v{vXa[j]}, {32*j}, v{vXa[0]}")
    a(f"""v_lshrrev_b32 v{t0}, 2, v{vL}
v_mul_u32_u24 v{t0}, 384, v{t0}
v_and_b32 v{t1}, 3, v{vL}
v_lshl_add_u32 v{t0}, v{t1}, 3, v{t0}
v_add_u32 v{t0}, 16384, v{t0}
v_bfe_u32 v{t1}, v{vL}, 3, 1
v_lshlrev_b32 v{t1}, 6, v{t1}
s_mul_i32 s{T}, s{sHW}, 96""")
    for j in range(3):
        a(f"s_add_u32 s{T+1}, s{T}, {32*j}\nv_xor_b32 v{t2}, s{T+1}, v{t1}\nv_add_u32 v{vWa[j]}, v{t0}, v{t2}")
    a(f"v_mov_b32 v{vOne}, 0x3f803f80\nv_mov_b32 v{vOne+1}, 0x3f803f80")
    for r in list(range(vSt, vSt+4)) + [c+i for c in vCs for i in range(4)]: a(f"v_mov_b32 v{r}, 0")
    def rowstat(reg, k):
        lo, hi = vTm + 2 * (k & 1), vTm + 2 * (k & 1) + 1
        return [f"v_lshlrev_b32 v{lo}, 16, v{reg}", f"v_and_b32 v{hi}, 0xffff0000, v{reg}",
                f"v_add_f32 v{vSt}, v{vSt}, v{lo}", f"v_fmac_f32 v{vSt+1}, v{lo}, v{lo}",
                f"v_add_f32 v{vSt+2}, v{vSt+2}, v{hi}", f"v_fmac_f32 v{vSt+3}, v{hi}, v{hi}"]
    work = ["s_waitcnt lgkmcnt(11)"]
    for k in range(16): work += rowstat(FX + k, k)
    work.append("s_waitcnt lgkmcnt(0)")
    for q in range(4):
        for j in range(3):
            work.append(f"v_mfma_f32_4x4x4_16b_bf16 {vr(vCs[j],4)}, {vr(vOne,2)}, {vr(FW + 2*(q*3+j),2)}, {vr(vCs[j],4)}")
    if cfg.nostats: work = []
    Lp = a.label("hloop"); Lw1 = a.label("hw"); Lw2 = a.label("hw"); Lnd = a.label("hnd"); Lnx = a.label("hnx")
    if cfg.hprio: a(f"s_setprio {cfg.hprio}")
    a(f""".p2align 3
{Lp}:""")
    tr(a, cfg)
    a(f"""s_cmp_lt_u32 s{sCnt}, 2
s_cbranch_scc1 {Lw1}
s_cmp_lt_u32 s{sCnt}, 7
s_cbranch_scc1 {Lw2}
s_waitcnt vmcnt(0)
{Lw2}:
s_waitcnt vmcnt(10)
{Lw1}:
s_waitcnt vmcnt(13)""")
    tr(a, cfg)
    a("s_barrier")
    tr(a, cfg)
    for k in range(0 if cfg.nohrd else 4): a(f"ds_read_b128 {vr(FX+4*k,4)}, v{vXa[k]}")
    for q in range(0 if cfg.nohrd else 4):
        for j in range(3):
            if q == 3 and j == 2: break
            a(f"ds_read_b64_tr_b16 {vr(FW + 2*(q*3+j),2)}, v{vWa[j]} offset:{q*6144}")
    a(f"s_cmp_lt_u32 s{sCnt}, 6\ns_cbranch_scc0 {Lnd}")
    G = dma_groups()
    n = len(work)
    last_rd = f"ds_read_b64_tr_b16 {vr(FW + 22,2)}, v{vWa[2]} offset:{3*6144}"
    w2 = list(work)
    if w2: w2.insert(1, last_rd)
    n = len(w2)
    for i, g in enumerate(G):
        a(g)
        for l in w2[i * n // 10:(i + 1) * n // 10]: a(l)
    a(f"s_branch {Lnx}\n{Lnd}:")
    for l in w2: a(l)
    a(f"""{Lnx}:
s_add_u32 s{sCnt}, s{sCnt}, 1
s_add_u32 s{sStage}, s{sStage}, {STG}
s_cmp_eq_u32 s{sStage}, {NST*STG}
s_cselect_b32 s{sStage}, 0, s{sStage}
s_mov_b32 s{sDlt}, {STG}
s_cmp_eq_u32 s{sStage}, {(NST-1)*STG}
s_cmov_b32 s{sDlt}, {(-(NST-1)*STG) & 0xffffffff:#x}""")
    for r in vXa + vWa: a(f"v_add_u32 v{r}, s{sDlt}, v{r}")
    a(f"s_cmp_lt_u32 s{sCnt}, 8\ns_cbranch_scc1 {Lp}")
    vM, vQ2, vSd, vRs = vTm, vTm+1, vSt+3, vSt+2
    BF = FX; AF = FX + 4
    a(f"""v_add_f32 v{vSt}, v{vSt}, v{vSt+2}
v_add_f32 v{vSt+1}, v{vSt+1}, v{vSt+3}
v_mov_b32 v{vSt+2}, v{vSt}
v_mov_b32 v{vSt+3}, v{vSt+1}
v_cmp_gt_u32 vcc, 32, v{vL}
v_lshlrev_b32 v{t2}, 4, v{vL}
v_permlane32_swap_b32 v{vSt}, v{vSt+2}
v_permlane32_swap_b32 v{vSt+1}, v{vSt+3}
s_lshl_b32 s{T}, s{sHW}, 10
v_add_f32 v{vM}, v{vSt}, v{vSt+2}
v_add_f32 v{vQ2}, v{vSt+1}, v{vSt+3}
v_mul_f32 v{vM}, {f2u(-1.0/512):#x}, v{vM}
v_mul_f32 v{vQ2}, {f2u(1.0/512):#x}, v{vQ2}
v_fma_f32 v{vQ2}, -v{vM}, v{vM}, v{vQ2}
v_max_f32 v{vQ2}, 0, v{vQ2}
v_add_f32 v{vQ2}, {f2u(1e-5):#x}, v{vQ2}
v_rsq_f32 v{vRs}, v{vQ2}
v_cndmask_b32 v{vM}, 0, v{vM}, vcc
v_mul_f32 v{vSd}, v{vQ2}, v{vRs}
v_cvt_pk_bf16_f32 v{t0}, v{vM}, v{vM}
v_cndmask_b32 v{vQ2}, 0, v{vSd}, vcc
v_and_b32 v{t1}, 0xffff0000, v{t0}
v_sub_f32 v{t1}, v{vM}, v{t1}
v_cvt_pk_bf16_f32 v{BF}, v{vM}, v{t1}
v_cvt_pk_bf16_f32 v{BF+1}, v{vM}, v{vQ2}
v_and_b32 v{t1}, 0xffff0000, v{BF+1}
v_sub_f32 v{t1}, v{vQ2}, v{t1}
v_cvt_pk_bf16_f32 v{BF+2}, v{t1}, 0
v_mov_b32 v{BF+3}, 0
v_add_u32 v{t2}, s{T}, v{t2}
v_and_b32 v{t0}, 31, v{vL}
s_lshl_b32 s{T}, s{sHW}, 8
v_lshl_add_u32 v{t0}, v{t0}, 3, s{T}
v_add_u32 v{t2}, {BFM}, v{t2}
v_add_u32 v{t0}, {RSM}, v{t0}
ds_write_b128 v{t2}, {vr(BF,4)}
ds_write_b64 v{t0}, {vr(vRs,2)}""")
    for j in range(3): a(f"v_mov_b32 v{vCs[j]+1}, v{vCs[j]}")
    a("s_nop 0")
    for j in range(3): a(f"v_permlane32_swap_b32 v{vCs[j]}, v{vCs[j]+1}")
    for j in range(3): a(f"v_add_f32 v{vCs[j]}, v{vCs[j]}, v{vCs[j]+1}")
    for j in range(3): a(f"v_mov_b32 v{vCs[j]+1}, v{vCs[j]}")
    a(f"v_and_b32 v{t0}, 15, v{vL}\ns_mul_i32 s{T}, s{sHW}, 768")
    for j in range(3): a(f"v_permlane16_swap_b32 v{vCs[j]}, v{vCs[j]+1}")
    a(f"v_lshl_add_u32 v{t0}, v{t0}, 4, s{T}\nv_add_u32 v{t0}, {AFM}, v{t0}")
    for j in range(3):
        b = vCs[j]; A = AF + 4 * j
        a(f"""v_add_f32 v{b}, v{b}, v{b+1}
v_mov_b32 v{A+2}, v{vB1[j]}
v_mov_b32 v{A+3}, 0
v_cvt_pk_bf16_f32 v{A}, v{b}, v{b}
v_and_b32 v{t1}, 0xffff0000, v{A}
v_sub_f32 v{t1}, v{b}, v{t1}
v_cvt_pk_bf16_f32 v{t1}, v{t1}, 0
v_lshl_or_b32 v{A+1}, v{vB1[j]}, 16, v{t1}
ds_write_b128 v{t0}, {vr(A,4)} offset:{256*j}""")
    a("s_waitcnt lgkmcnt(0)\ns_barrier")
    stamp(a, cfg, 2)
    srd(a, sWS, sARG + 20, WS_SIZE)
    a(f"s_branch {Ldone}")
    hi1 = R.hi
    a(f"{Lhelp}_c:")
    R = Regs(2)
    t0, t1, t2, t3 = R.alloc(), R.alloc(), R.alloc(), R.alloc()
    vXa = [R.alloc() for _ in range(4)]
    vWa = R.alloc(); vL16 = R.alloc(); vVw = R.alloc(); vVr = R.alloc(); vAa = R.alloc(); vBa = R.alloc(); vRa = R.alloc()
    vRS = [R.alloc(2, 2) for _ in range(2)]
    vK = R.alloc(8, 2)
    FB = R.alloc(40, 4)
    FXc = lambda b, t: FB + 20 * b + 4 * t
    FWc = lambda b, p: FB + 20 * b + 8 + 4 * p
    ACC = [[R.alloc(16, 4) for _ in range(3)] for _ in range(2)]
    sMH, sNH, sCnt, sDlt, sSt = T + 8, T + 9, T + 10, T + 11, T + 12
    a(f"""s_and_b32 s{sMH}, s{sWAVE}, 1
s_lshr_b32 s{sNH}, s{sWAVE}, 1
v_lshlrev_b32 v{vL16}, 4, v{vL}
v_and_b32 v{t0}, 31, v{vL}
v_lshrrev_b32 v{t1}, 5, v{vL}
v_bfe_u32 v{t2}, v{vL}, 1, 3
v_xor_b32 v{t2}, v{t2}, v{t1}
v_lshlrev_b32 v{t2}, 4, v{t2}
v_lshl_add_u32 v{t2}, v{t0}, 7, v{t2}
s_lshl_b32 s{T}, s{sMH}, 13
v_add_u32 v{vXa[0]}, s{T}, v{t2}""")
    for j in range(1, 4): a(f"v_xor_b32 v{vXa[j]}, {32*j}, v{vXa[0]}")
    a(f"""s_lshl_b32 s{T}, s{sNH}, 9
s_add_u32 s{T}, s{T}, {AFM}
v_lshl_add_u32 v{vAa}, v{t0}, 4, s{T}
s_lshl_b32 s{T}, s{sMH}, 11
s_add_u32 s{T}, s{T}, {BFM}
v_add_u32 v{vBa}, s{T}, v{vL16}
s_lshl_b32 s{T}, s{sMH}, 9
s_add_u32 s{T}, s{T}, {RSM}
v_lshl_add_u32 v{vRa}, v{t0}, 3, s{T}
v_lshlrev_b32 v{t0}, 5, v{t0}
v_lshl_add_u32 v{t0}, v{t1}, 3, v{t0}
s_lshl_b32 s{T}, s{sWAVE}, 11
s_add_u32 s{T}, s{T}, {VSM}
v_add_u32 v{vVw}, s{T}, v{t0}
v_lshrrev_b32 v{t0}, 4, v{vL}
v_bfe_u32 v{t2}, v{vL}, 2, 2
v_lshl_add_u32 v{t0}, v{t0}, 3, v{t2}
v_and_b32 v{t3}, 3, v{vL}
v_lshlrev_b32 v{t3}, 3, v{t3}
v_lshl_add_u32 v{t0}, v{t0}, 5, v{t3}
v_add_u32 v{vVr}, s{T}, v{t0}
v_lshl_add_u32 v{t0}, v{t1}, 3, v{t2}
v_mul_u32_u24 v{t0}, 384, v{t0}
v_bfe_u32 v{t1}, v{vL}, 3, 1
v_xor_b32 v{t1}, s{sNH}, v{t1}
v_lshl_add_u32 v{t0}, v{t1}, 6, v{t0}
v_bfe_u32 v{t1}, v{vL}, 4, 1
v_lshlrev_b32 v{t1}, 5, v{t1}
v_add3_u32 v{t0}, v{t0}, v{t1}, v{t3}
v_add_u32 v{vWa}, 16384, v{t0}""")
    for t in range(2):
        for p in range(3):
            for i in range(16): a(f"v_mov_b32 v{ACC[t][p]+i}, 0")
    a("s_waitcnt lgkmcnt(0)")
    if cfg.pf:
        sPitch = T + 13
        srd(a, sX, sARG, 2048*1024)
        a(f"""s_movk_i32 s{sPitch}, 2752
s_cmp_eq_u32 s{sKIND}, 0
s_cmov_b32 s{sPitch}, 3072
s_cselect_b32 s{sW}, s{sARG+2}, s{sARG+8}
s_cselect_b32 s{sW+1}, s{sARG+3}, s{sARG+9}
s_lshl_b32 s{sW+2}, s{sPitch}, 9
s_mov_b32 s{sW+3}, 0x20000
v_and_b32 v{t0}, 15, v{vL}
v_lshrrev_b32 v{t1}, 4, v{vL}
v_lshlrev_b32 v{t1}, 7, v{t1}
v_lshl_add_u32 v{t2}, v{t0}, 10, v{t1}
v_mad_u32_u24 v{t3}, v{t0}, s{sPitch}, v{t1}
s_lshl_b32 s{T}, s{sRB}, 17
s_lshl_b32 s{T+1}, s{sNB}, 14
s_add_u32 s{T}, s{T}, s{T+1}
s_and_b32 s{T+1}, s{sRB}, 3
s_lshl_b32 s{T+1}, s{T+1}, 4
s_lshl_b32 s{T+2}, s{sWAVE}, {7 if cfg.pf == 1 else 6}
s_add_u32 s{T+1}, s{T+1}, s{T+2}
s_mul_i32 s{T+1}, s{T+1}, s{sPitch}
s_mul_i32 s{T+2}, s{sNB}, 384
s_add_u32 s{T+1}, s{T+1}, s{T+2}
s_lshl_b32 s{T+2}, s{sPitch}, {6 if cfg.pf == 1 else 8}
s_add_u32 s{T+2}, s{T+2}, s{T+1}
s_and_b32 s{T+3}, s{sWAVE}, 1
s_lshl_b32 s{T+3}, s{T+3}, 9
s_add_u32 s{T}, s{T}, s{T+3}
buffer_load_dword v{FB}, v{t3}, s[{sW}:{sW+3}], s{T+1} offen
s_cmp_lt_u32 s{sWAVE}, 2
s_cbranch_scc0 L_nopfx
buffer_load_dword v{FB+1}, v{t2}, s[{sX}:{sX+3}], s{T} offen
L_nopfx:
buffer_load_dword v{FB+2}, v{t3}, s[{sW}:{sW+3}], s{T+2} offen
s_waitcnt vmcnt(0)""")
    srd(a, sWS, sARG + 20, WS_SIZE)
    def reads(b, ks):
        r = [f"ds_read_b128 {vr(FXc(b,0),4)}, v{vXa[ks]}"]
        for p in range(3):
            r.append(f"ds_read_b64_tr_b16 {vr(FWc(b,p),2)}, v{vWa} offset:{ks*6144+p*128}")
            r.append(f"ds_read_b64_tr_b16 {vr(FWc(b,p)+2,2)}, v{vWa} offset:{ks*6144+p*128+1536}")
        r.append(f"ds_read_b128 {vr(FXc(b,1),4)}, v{vXa[ks]} offset:4096")
        return r
    def M(b, t, p):
        if cfg.m16:
            for q in range(2): a(f"v_mfma_f32_16x16x32_bf16 {vr(ACC[t][p]+4*q,4)}, {vr(FWc(b,p),4)}, {vr(FXc(b,t),4)}, {vr(ACC[t][p]+4*q,4)}")
        elif not cfg.nocomp: a(f"v_mfma_f32_32x32x16_bf16 {vr(ACC[t][p],16)}, {vr(FWc(b,p),4)}, {vr(FXc(b,t),4)}, {vr(ACC[t][p],16)}")
    def kstep(b, nxt, waits=True, extra=None):
        extra = extra or [[] for _ in range(6)]
        order = [(0,0),(0,1),(0,2),(1,0),(1,1),(1,2)]
        wc = [5, 5, 5, 6, None, None]
        for i, (t, p) in enumerate(order):
            if waits and wc[i] is not None: a(f"s_waitcnt lgkmcnt({wc[i] if nxt else [5,3,1,0][i]})")
            M(b, t, p)
            if nxt and i < 4:
                a(nxt[2*i]); a(nxt[2*i+1])
            for l in extra[i]: a(l)
    a(f"s_mov_b32 s{sCnt}, 0\ns_mov_b32 s{sSt}, 0\ns_barrier")
    for l in reads(0, 0): a(l)
    Lp = a.label("cloop"); Lx = a.label("cexit")
    a(f".p2align 3\n{Lp}:")
    kstep(0, reads(1, 1))
    kstep(1, reads(0, 2))
    ex = [[] for _ in range(6)]
    ex[4] = [f"s_add_u32 s{sCnt}, s{sCnt}, 1", f"s_add_u32 s{sSt}, s{sSt}, 1", f"s_mov_b32 s{sDlt}, {STG}", f"s_cmp_eq_u32 s{sSt}, {NST}",
             f"s_cmov_b32 s{sDlt}, {(-(NST-1)*STG) & 0xffffffff:#x}", f"s_cmov_b32 s{sSt}, 0"]
    ex[5] = [f"v_add_u32 v{r}, s{sDlt}, v{r}" for r in vXa + [vWa]]
    kstep(0, reads(1, 3), extra=ex)
    a("s_waitcnt lgkmcnt(0)"); tr(a, cfg)
    a(f"s_cmp_eq_u32 s{sCnt}, 8\ns_cbranch_scc1 {Lx}\ns_barrier"); tr(a, cfg)
    kstep(1, reads(0, 0), waits=False)
    a(f"s_branch {Lp}\n{Lx}:")
    kstep(1, None, waits=False)
    stamp(a, cfg, 1)
    a("s_barrier")
    stamp(a, cfg, 2)
    AFr = lambda p: FB + 4 * p
    BFr = lambda t: FB + 12 + 4 * t
    for t in range(2): a(f"ds_read_b128 {vr(BFr(t),4)}, v{vBa} offset:{1024*t}")
    for p in range(3): a(f"ds_read_b128 {vr(AFr(p),4)}, v{vAa} offset:{1024*p}")
    for t in range(2): a(f"ds_read_b64 {vr(vRS[t],2)}, v{vRa} offset:{256*t}")
    sTT, sP0 = T + 6, T + 7
    Lffn = a.label("p1ffn")
    a(f"""s_lshl_b32 s{sTT}, s{sRB}, 2
s_lshl_b32 s{T}, s{sMH}, 1
s_add_u32 s{sTT}, s{sTT}, s{T}
s_mul_i32 s{sP0}, s{sNB}, 6
s_add_u32 s{sP0}, s{sP0}, s{sNH}
s_waitcnt lgkmcnt(4)""")
    for p in range(3):
        if p: a(f"s_waitcnt lgkmcnt({4-p})")
        for t in range(2):
            a(f"v_mfma_f32_32x32x16_bf16 {vr(ACC[t][p],16)}, {vr(AFr(p),4)}, {vr(BFr(t),4)}, {vr(ACC[t][p],16)}")
    a(f"s_cmp_eq_u32 s{sKIND}, 1\ns_waitcnt lgkmcnt(0)\ns_cbranch_scc1 {Lffn}")
    OB = FB + 8
    a(f"""v_mul_f32 v{vK}, {f2u(0.25*LOG2E):#x}, v{vRS[0]}
v_mul_f32 v{vK+1}, {f2u(0.25*LOG2E):#x}, v{vRS[1]}""")
    cnt = 0
    for p in range(3):
        Lk = a.label("p1k")
        a(f"""s_add_u32 s{T+2}, s{sP0}, {2*p}
s_and_b32 s{T+3}, s{T+2}, 15
s_lshl_b32 s{T+3}, s{T+3}, 7
s_add_u32 s{T+3}, s{T+3}, s{sTT}
s_cmp_lt_u32 s{T+2}, 16
s_cselect_b32 s{T+4}, 10, 11
s_cselect_b32 s{T+5}, {WS_Q}, {WS_KV}
s_cselect_b64 vcc, -1, 0
s_lshl_b32 s{T+3}, s{T+3}, s{T+4}
v_cndmask_b32 v{vK+2}, v{vRS[0]}, v{vK}, vcc
v_cndmask_b32 v{vK+4}, v{vRS[1]}, v{vK+1}, vcc
s_add_u32 s{T+3}, s{T+3}, s{T+5}
s_lshl_b32 s{T+13}, 1, s{T+4}
s_lshl_b32 s{T+4}, 64, s{T+4}
s_cmp_ge_u32 s{T+2}, 32
s_cselect_b32 s{T+5}, 1024, 0
s_add_u32 s{T+3}, s{T+3}, s{T+5}
s_add_u32 s{T+4}, s{T+4}, s{T+3}""")
        for t in range(2):
            ac = ACC[t][p]; o = OB + 8 * (cnt & 3); cnt += 1
            Lk = a.label("p1k")
            for r in range(0, 16, 2): a(f"v_pk_mul_f32 {P(ac+r)}, {P(ac+r)}, {P(vK+2+2*t)} op_sel_hi:[1,0]")
            for r in range(8): a(f"v_cvt_pk_bf16_f32 v{o+r}, v{ac+2*r}, v{ac+2*r+1}")
            a(f"""s_cmp_lt_u32 s{T+2}, 32
s_cbranch_scc1 {Lk}
ds_write_b64 v{vVw}, {vr(o,2)}
ds_write_b64 v{vVw}, {vr(o+2,2)} offset:16
ds_write_b64 v{vVw}, {vr(o+4,2)} offset:1024
ds_write_b64 v{vVw}, {vr(o+6,2)} offset:1040
s_waitcnt lgkmcnt(0)
ds_read_b64_tr_b16 {vr(o,2)}, v{vVr}
ds_read_b64_tr_b16 {vr(o+2,2)}, v{vVr} offset:128
ds_read_b64_tr_b16 {vr(o+4,2)}, v{vVr} offset:1024
ds_read_b64_tr_b16 {vr(o+6,2)}, v{vVr} offset:1152
s_waitcnt lgkmcnt(0)
{Lk}:
buffer_store_dwordx4 {vr(o,4)}, v{vL16}, s[{sWS}:{sWS+3}], s{T+3} offen {cfg.sc}
buffer_store_dwordx4 {vr(o+4,4)}, v{vL16}, s[{sWS}:{sWS+3}], s{T+4} offen {cfg.sc}""")
            if t == 0: a(f"s_add_u32 s{T+3}, s{T+3}, s{T+13}\ns_add_u32 s{T+4}, s{T+4}, s{T+13}")
    a(f"s_branch {Ldone}")
    a(f"{Lffn}:")
    C1 = -2.0 * 0.7978845608028654 * LOG2E
    C3 = C1 * 0.044715
    for t in range(2):
        a(f"""v_mul_f32 v{vK+4*t}, {f2u(C1):#x}, v{vRS[t]}
v_mul_f32 v{vK+4*t+2}, v{vRS[t]}, v{vRS[t]}
v_mul_f32 v{vK+4*t+1}, {f2u(0.044715):#x}, v{vK+4*t}
v_mul_f32 v{vK+4*t+1}, v{vK+4*t+1}, v{vK+4*t+2}""")
    a(f"""s_mul_i32 s{T+1}, s{sTT}, {NKS}
s_lshl_b32 s{T+2}, s{sP0}, 1
s_add_u32 s{T+1}, s{T+1}, s{T+2}
s_add_u32 s{T+1}, s{T+1}, 32
s_lshl_b32 s{T+1}, s{T+1}, 10
s_add_u32 s{T+1}, s{T+1}, {WS_AH}
s_add_u32 s{T+2}, s{T+1}, {NKS*1024}""")
    cnt = 0
    for p in range(3):
        a(f"s_cmp_ge_u32 s{sP0}, {43 - 2*p}\ns_cbranch_scc1 {Ldone}")
        for t in range(2):
            ac = ACC[t][p]; w = FB; o = FB + 16 + 8 * (cnt % 3); cnt += 1
            kc = P(vK + 4 * t); rs = P(vRS[t])
            for r in range(0, 16, 2): a(f"v_pk_mul_f32 {P(w+r)}, {P(ac+r)}, {P(ac+r)}")
            for r in range(0, 16, 2): a(f"v_pk_fma_f32 {P(w+r)}, {P(w+r)}, {kc}, {kc} op_sel:[0,1,0] op_sel_hi:[1,1,0]")
            for r in range(0, 16, 2): a(f"v_pk_mul_f32 {P(w+r)}, {P(w+r)}, {P(ac+r)}")
            for r in range(16): a(f"v_exp_f32 v{w+r}, v{w+r}")
            for r in range(0, 16, 2): a(f"v_pk_fma_f32 {P(w+r)}, {P(w+r)}, {rs}, {rs} op_sel:[0,1,1] op_sel_hi:[1,1,1]")
            for r in range(16): a(f"v_rcp_f32 v{w+r}, v{w+r}")
            for r in range(0, 16, 2): a(f"v_pk_mul_f32 {P(ac+r)}, {P(ac+r)}, {P(w+r)}")
            for r in range(8): a(f"v_cvt_pk_bf16_f32 v{o+r}, v{ac+2*r}, v{ac+2*r+1}")
            a(f"buffer_store_dwordx4 {vr(o,4)}, v{vL16}, s[{sWS}:{sWS+3}], s{T+1+t} offen {cfg.sc}")
            a(f"buffer_store_dwordx4 {vr(o+4,4)}, v{vL16}, s[{sWS}:{sWS+3}], s{T+1+t} offen offset:1024 {cfg.sc}")
        if p < 2: a(f"s_add_u32 s{T+1}, s{T+1}, 4096\ns_add_u32 s{T+2}, s{T+2}, 4096")
    a(f"{Ldone}:")
    stamp(a, cfg, 3)
    return max(R.hi, hi1)

sHEAD, sQB, sQP, sKH = 59, 60, 61, 62
CMB = 131072
def phase2(a, cfg):
    T = sT
    vL = 1
    R = Regs(2)
    t0, t1, vL16, vIdx, vAK, vAV = [R.alloc() for _ in range(6)]
    vQ = [R.alloc(4, 4) for _ in range(2)]
    vK = [R.alloc(4, 4) for _ in range(2)]
    vV = [R.alloc(8, 4) for _ in range(2)]
    vS = [R.alloc(16, 4) for _ in range(2)]
    vO = [R.alloc(16, 4) for _ in range(2)]
    UNR = 4
    sIt, sEx = T + 8, T + 10
    WSR = f"s[{sWS}:{sWS+3}]"
    a(f"""s_and_b32 s{T}, s{sWG}, 7
s_lshl_b32 s{T}, s{T}, 2
s_bfe_u32 s{T+1}, s{sWG}, 0x20003
s_add_u32 s{sHEAD}, s{T}, s{T+1}
s_lshr_b32 s{sQB}, s{sWG}, 5
s_and_b32 s{sQP}, s{sWAVE}, 3
s_lshr_b32 s{sKH}, s{sWAVE}, 2
v_lshlrev_b32 v{vL16}, 4, v{vL}""")
    if not cfg.fused:
        a("s_waitcnt lgkmcnt(0)")
        srd(a, sWS, sARG + 20, WS_SIZE)
    a(f"""s_lshl_b32 s{T}, s{sHEAD}, 6
s_lshl_b32 s{T+1}, s{sQB}, 3
s_add_u32 s{T}, s{T}, s{T+1}
s_lshl_b32 s{T+1}, s{sQP}, 1
s_add_u32 s{T}, s{T}, s{T+1}
s_lshl_b32 s{T}, s{T}, 10
buffer_load_dwordx4 {vr(vQ[0],4)}, v{vL16}, {WSR}, s{T} offen {cfg.sc}
buffer_load_dwordx4 {vr(vQ[1],4)}, v{vL16}, {WSR}, s{T} offen offset:1024 {cfg.sc}""")
    a(f"""s_lshl_b32 s{T}, s{sKH}, 16
s_lshl_b32 s{T+1}, s{sQP}, 10
s_add_u32 s{T}, s{T}, s{T+1}
s_lshl_b32 s{T+1}, s{sHEAD}, 17
s_add_u32 s{T+1}, s{T+1}, s{T}
s_mov_b32 m0, s{T}
s_add_u32 s{T+1}, s{T+1}, {WS_KV}""")
    for i in range(16):
        a(f"buffer_load_dwordx4 v{vL16}, {WSR}, s{T+1} offen {cfg.sc} lds")
        if i < 15: a(f"s_add_u32 m0, m0, 4096\ns_add_u32 s{T+1}, s{T+1}, 4096")
    a(f"""v_mov_b32 v{vIdx}, 0xdddddddd
v_and_b32 v{t0}, 27, v{vL}
v_mov_b32 v{t1}, 0x3f803f80
v_cmp_eq_u32 vcc, 16, v{t0}
s_lshl_b32 s{T}, s{sKH}, 16
v_add_u32 v{vAK}, s{T}, v{vL16}
v_cndmask_b32 v{t0}, 0, v{t1}, vcc""")
    for b in range(2):
        for r in range(8): a(f"v_mov_b32 v{vV[b]+r}, v{t0}")
    for j in range(2):
        for r in range(16): a(f"v_mov_b32 v{vO[j]+r}, 0")
    for r in range(8, 16): a(f"v_mov_b32 v{vS[1]+r}, 0")
    a(f"""v_lshrrev_b32 v{t0}, 5, v{vL}
v_lshlrev_b32 v{t0}, 8, v{t0}
v_and_b32 v{t1}, 15, v{vL}
v_lshlrev_b32 v{t1}, 4, v{t1}
v_add3_u32 v{vAV}, v{t0}, v{t1}, s{T}
s_mov_b32 s{sEx}, 0x0000ffff
s_mov_b32 s{sEx+1}, 0x0000ffff""")
    def rdK(b, t): a(f"ds_read_b128 {vr(vK[b],4)}, v{vAK} offset:{t*2048}")
    def rdV(b, t):
        a(f"s_mov_b64 exec, s[{sEx}:{sEx+1}]")
        a(f"ds_read_b128 {vr(vV[b],4)}, v{vAV} offset:{t*2048+1024}")
        a(f"ds_read_b128 {vr(vV[b]+4,4)}, v{vAV} offset:{t*2048+1024+512}")
        a(f"s_mov_b64 exec, -1")
    def QK(sb, kb, j): a(f"v_mfma_f32_32x32x16_bf16 {vr(vS[sb],16)}, {vr(vK[kb],4)}, {vr(vQ[j],4)}, 0")
    def PV(j, vb, half, sb): a(f"v_smfmac_f32_32x32x32_bf16 {vr(vO[j],16)}, {vr(vV[vb]+4*half,4)}, {vr(vS[sb]+8*half,8)}, v{vIdx}")
    def E(sb, lo, hi):
        for r in range(lo, hi): a(f"v_exp_f32 v{vS[sb]+r}, v{vS[sb]+r}")
    a("s_waitcnt vmcnt(11)\ns_barrier")
    stamp(a, cfg, 1)
    rdK(0, 0); rdV(0, 0); rdK(1, 1)
    a(f"s_mov_b32 s{sIt}, 0\ns_setprio 3\ns_waitcnt lgkmcnt(0)")
    QK(0, 0, 0)
    a("s_nop 7\ns_nop 3")
    Lp = a.label("aloop"); L2 = a.label("a2"); L5 = a.label("a5"); Lq = a.label("aq")
    a(f".p2align 3\n{Lp}:")
    for u in range(UNR):
        c = u & 1; p = c ^ 1
        E(0, 0, 2); PV(1, p, 1, 1); E(0, 2, 4)
        QK(1, c, 1)
        rdV(p, u + 1)
        E(0, 4, 10)
        PV(0, c, 0, 0); E(0, 10, 16)
        E(1, 0, 2); PV(0, c, 1, 0); E(1, 2, 4)
        a("s_waitcnt lgkmcnt(0)")
        QK(0, p, 0)
        rdK(c, u + 2)
        E(1, 4, 10); PV(1, c, 0, 1); E(1, 10, 16)
    a(f"""v_add_u32 v{vAK}, {UNR*2048}, v{vAK}
v_add_u32 v{vAV}, {UNR*2048}, v{vAV}
s_add_u32 s{sIt}, s{sIt}, 1
s_cmp_eq_u32 s{sIt}, 1
s_cbranch_scc0 {L2}
s_setprio 2
s_branch {Lp}
{L2}:
s_cmp_eq_u32 s{sIt}, 2
s_cbranch_scc0 {L5}
s_waitcnt vmcnt(5)
s_barrier
s_setprio 3
s_branch {Lp}
{L5}:
s_cmp_eq_u32 s{sIt}, 4
s_cbranch_scc0 {L5}_b
s_setprio 2
s_branch {Lp}
{L5}_b:
s_cmp_eq_u32 s{sIt}, 5
s_cbranch_scc0 {Lq}
s_waitcnt vmcnt(0)
s_barrier
s_setprio 3
s_branch {Lp}
{Lq}:
s_cmp_lt_u32 s{sIt}, 7
s_cbranch_scc1 {Lp}
s_setprio 2
s_cmp_eq_u32 s{sIt}, 7
s_cbranch_scc1 {Lp}
s_setprio 0""")
    PV(1, 1, 1, 1)
    a(f"""s_lshl_b32 s{T}, s{sWAVE}, 0
s_mul_i32 s{T}, s{T}, 3072
s_add_u32 s{T}, s{T}, {CMB}
v_add_u32 v{t0}, s{T}, v{vL16}
s_xor_b32 s{T}, s{sWAVE}, 4
s_mul_i32 s{T}, s{T}, 3072
s_add_u32 s{T}, s{T}, {CMB}
v_add_u32 v{t1}, s{T}, v{vL16}
s_cmp_eq_u32 s{sKH}, 0
s_cselect_b64 vcc, -1, 0
s_lshl_b32 s{T}, s{sQB}, 3
s_lshl_b32 s{T+1}, s{sQP}, 1
s_add_u32 s{T}, s{T}, s{T+1}
s_add_u32 s{T}, s{T}, s{sKH}
s_mul_i32 s{T}, s{T}, {NKS}
s_add_u32 s{T}, s{T}, s{sHEAD}
s_lshl_b32 s{T}, s{T}, 10
s_add_u32 s{T}, s{T}, {WS_AH}
s_waitcnt lgkmcnt(0)""")
    stamp(a, cfg, 2)
    snd = vS[0]; kp = vS[1]
    for r in range(9): a(f"v_cndmask_b32 v{snd+r}, v{vO[0]+r}, v{vO[1]+r}, vcc")
    for q in range(2): a(f"ds_write_b128 v{t0}, {vr(snd+4*q,4)} offset:{q*1024}")
    a(f"ds_write_b128 v{t0}, {vr(snd+8,4)} offset:2048")
    for r in range(9): a(f"v_cndmask_b32 v{kp+r}, v{vO[1]+r}, v{vO[0]+r}, vcc")
    a("s_waitcnt lgkmcnt(0)\ns_barrier")
    for q in range(3): a(f"ds_read_b128 {vr(snd+4*q,4)}, v{t1} offset:{q*1024}")
    a("s_waitcnt lgkmcnt(0)")
    a(f"v_add_f32 v{kp+8}, v{kp+8}, v{snd+8}\nv_rcp_f32 v{t0}, v{kp+8}")
    for r in range(8): a(f"v_add_f32 v{kp+r}, v{kp+r}, v{snd+r}")
    for r in range(8): a(f"v_mul_f32 v{kp+r}, v{kp+r}, v{t0}")
    for r in range(4): a(f"v_cvt_pk_bf16_f32 v{snd+r}, v{kp+2*r}, v{kp+2*r+1}")
    a(f"buffer_store_dwordx4 {vr(snd,4)}, v{vL16}, {WSR}, s{T} offen {cfg.sc}")
    stamp(a, cfg, 3)
    return R.hi

sRT3, sCT, sTT3, sKQ = 59, 60, 61, 62
sB2 = 20
def phase3(a, cfg):
    T = sT
    vL = 1
    R = Regs(2)
    t0, t1, t2, t3, vL16, vWg, vWa, vOut = [R.alloc() for _ in range(8)]
    vXr = R.alloc(4, 4); vBr = R.alloc(4, 4)
    FWb = [R.alloc(8, 4) for _ in range(3)]
    ACC = R.alloc(32, 4)
    HF = R.alloc(88, 4)
    OF = R.alloc(32, 4)
    WSR = f"s[{sWS}:{sWS+3}]"
    sH, sWo, sN, sM0 = T + 8, T + 9, T + 10, T + 11
    a(f"""s_and_b32 s{T}, s{sWG}, 7
s_lshl_b32 s{T}, s{T}, 2
s_bfe_u32 s{T+1}, s{sWG}, 0x20003
s_add_u32 s{sRT3}, s{T}, s{T+1}
s_lshr_b32 s{sCT}, s{sWG}, 5
s_and_b32 s{sTT3}, s{sWAVE}, 1
s_lshr_b32 s{sKQ}, s{sWAVE}, 1
v_lshlrev_b32 v{vL16}, 4, v{vL}
v_lshrrev_b32 v{t0}, 3, v{vL}
v_and_b32 v{t1}, 7, v{vL}
v_bfe_u32 v{t2}, v{vL}, 4, 1
v_lshlrev_b32 v{t2}, 2, v{t2}
v_xor_b32 v{t1}, v{t1}, v{t2}
v_lshlrev_b32 v{t1}, 4, v{t1}
v_lshl_add_u32 v{vWg}, v{t0}, 10, v{t1}
s_lshl_b32 s{T}, s{sRT3}, 1
s_add_u32 s{T}, s{T}, s{sTT3}
s_mul_i32 s{sH}, s{T}, {NKS}
s_mul_i32 s{T+1}, s{sKQ}, 22
s_add_u32 s{T+2}, s{sH}, s{T+1}
s_add_u32 s{T+2}, s{T+2}, 32
s_lshl_b32 s{T+2}, s{T+2}, 10
s_add_u32 s{T+2}, s{T+2}, {WS_AH}
s_lshl_b32 s{T+1}, s{T+1}, 14
s_lshl_b32 s{T+3}, s{sTT3}, 13
s_lshl_b32 s{sWo}, s{sCT}, 7
s_add_u32 s{sWo}, s{sWo}, s{T+3}
s_add_u32 s{T+1}, s{T+1}, s{sWo}
s_lshl_b32 s{sM0}, s{sWAVE}, 10
s_mov_b32 m0, s{sM0}""")
    if not cfg.fused:
        a("s_waitcnt lgkmcnt(0)")
        srd(a, sWS, sARG + 20, WS_SIZE)
    srd(a, sW2, sARG + 12, 1376 * 1024)
    W2R = f"s[{sW2}:{sW2+3}]"; WOR = f"s[{sWO}:{sWO+3}]"
    def issue_hw(j, slot):
        a(f"buffer_load_dwordx4 {vr(HF+4*j,4)}, v{vL16}, {WSR}, s{T+2} offen {cfg.sc}")
        a(f"s_add_u32 m0, s{sM0}, {slot*8192}\ns_add_u32 s{T+2}, s{T+2}, 1024")
        a(f"buffer_load_dwordx4 v{vWg}, {W2R}, s{T+1} offen lds")
        a(f"s_add_u32 s{T+1}, s{T+1}, 16384")
    for j in range(18): issue_hw(j, j)
    srd(a, sX, sARG, 2048 * 1024)
    srd(a, sB2, sARG + 14, 1024)
    srd(a, sWO, sARG + 4, 512 * 1024)
    srd(a, sOUT, sARG + 16, 2048 * 1024)
    a(f"""v_and_b32 v{t0}, 31, v{vL}
v_lshrrev_b32 v{t1}, 5, v{vL}
v_lshlrev_b32 v{t1}, 4, v{t1}
s_lshl_b32 s{T+4}, s{sCT}, 7
s_lshl_b32 s{T+5}, s{sKQ}, 5
s_add_u32 s{T+4}, s{T+4}, s{T+5}
v_add_u32 v{t1}, s{T+4}, v{t1}
s_lshl_b32 s{T+5}, s{T}, 15
v_lshl_add_u32 v{vOut}, v{t0}, 10, v{t1}
v_add_u32 v{vOut}, s{T+5}, v{vOut}
buffer_load_dwordx4 {vr(vXr,4)}, v{vOut}, s[{sX}:{sX+3}], 0 offen
buffer_load_dwordx4 {vr(vBr,4)}, v{t1}, s[{sB2}:{sB2+3}], 0 offen""")
    a(f"""v_lshrrev_b32 v{t0}, 5, v{vL}
v_bfe_u32 v{t1}, v{vL}, 2, 2
v_lshl_add_u32 v{t0}, v{t0}, 2, v{t1}
v_lshlrev_b32 v{t0}, 7, v{t0}
v_bfe_u32 v{t1}, v{vL}, 3, 1
v_bfe_u32 v{t2}, v{vL}, 4, 1
v_lshl_add_u32 v{t1}, v{t1}, 1, v{t2}
v_xor_b32 v{t1}, s{sKQ}, v{t1}
v_and_b32 v{t2}, 3, v{vL}
v_lshlrev_b32 v{t2}, 3, v{t2}
v_lshl_add_u32 v{t1}, v{t1}, 5, v{t2}
s_lshl_b32 s{T+4}, s{sKQ}, 11
v_add3_u32 v{vWa}, v{t0}, v{t1}, s{T+4}
v_xor_b32 v{t3}, 64, v{vWa}""")
    vWa2 = t3
    for r in range(8, 32): a(f"v_mov_b32 v{ACC+r}, 0")
    base = [0]
    def rdW(b, slot):
        off = slot * 8192 - base[0]
        if off < 0 or off + 1024 > 65535:
            d = slot * 8192 - base[0]
            a(f"v_add_u32 v{vWa}, {d & 0xffffffff:#x}, v{vWa}\nv_add_u32 v{vWa2}, {d & 0xffffffff:#x}, v{vWa2}")
            base[0] = slot * 8192; off = 0
        a(f"ds_read_b64_tr_b16 {vr(FWb[b],2)}, v{vWa} offset:{off}")
        a(f"ds_read_b64_tr_b16 {vr(FWb[b]+2,2)}, v{vWa} offset:{off+1024}")
        a(f"ds_read_b64_tr_b16 {vr(FWb[b]+4,2)}, v{vWa2} offset:{off}")
        a(f"ds_read_b64_tr_b16 {vr(FWb[b]+6,2)}, v{vWa2} offset:{off+1024}")
    def mm(b, frag):
        for p in range(2): a(f"v_mfma_f32_32x32x16_bf16 {vr(ACC+16*p,16)}, {vr(FWb[b]+4*p,4)}, {vr(frag,4)}, {vr(ACC+16*p,16)}")
    def run(steps):
        n = len(steps)
        rdW(0, steps[0][0])
        if n > 1: rdW(1, steps[1][0])
        for i in range(n):
            if i + 2 < n: rdW((i + 2) % 3, steps[i + 2][0])
            a(f"s_waitcnt lgkmcnt({4 * min(2, n - 1 - i)})")
            mm(i % 3, steps[i][1])
    a("s_waitcnt vmcnt(26)\ns_barrier")
    stamp(a, cfg, 1)
    for r in range(8): a(f"v_mov_b32 v{ACC+r}, 0")
    a("s_nop 1")
    run([(j, HF + 4*j) for j in range(6)])
    a("s_waitcnt vmcnt(14)\ns_barrier")
    run([(j, HF + 4*j) for j in range(6, 12)])
    a("s_waitcnt vmcnt(0)\ns_barrier")
    Lsk = a.label("p3sk")
    for j in range(18, 20): issue_hw(j, j - 18)
    a(f"s_cmp_eq_u32 s{sKQ}, 3\ns_cbranch_scc1 {Lsk}")
    for j in range(20, 22): issue_hw(j, j - 18)
    a(f"{Lsk}:")
    a(f"""s_lshl_b32 s{T+1}, s{sKQ}, 17
s_add_u32 s{T+1}, s{T+1}, s{sWo}
s_lshl_b32 s{T+2}, s{sKQ}, 3
s_add_u32 s{T+2}, s{T+2}, s{sH}
s_lshl_b32 s{T+2}, s{T+2}, 10
s_add_u32 s{T+2}, s{T+2}, {WS_AH}""")
    for j in range(8):
        a(f"s_add_u32 m0, s{sM0}, {(4+j)*8192}\ns_nop 0")
        a(f"buffer_load_dwordx4 v{vWg}, {WOR}, s{T+1} offen lds")
        a(f"s_add_u32 s{T+1}, s{T+1}, 16384")
    for j in range(8):
        a(f"buffer_load_dwordx4 {vr(OF+4*j,4)}, v{vL16}, {WSR}, s{T+2} offen {cfg.sc}")
        a(f"s_add_u32 s{T+2}, s{T+2}, 1024")
    run([(j, HF + 4*j) for j in range(12, 18)])
    XB = HF
    for v in (vXr, vBr):
        a(f"v_permlane32_swap_b32 v{v}, v{v+2}\nv_permlane32_swap_b32 v{v+1}, v{v+3}")
    for r in range(4):
        a(f"""v_lshlrev_b32 v{XB+2*r}, 16, v{vXr+r}
v_and_b32 v{XB+2*r+1}, 0xffff0000, v{vXr+r}
v_lshlrev_b32 v{XB+8+2*r}, 16, v{vBr+r}
v_and_b32 v{XB+8+2*r+1}, 0xffff0000, v{vBr+r}""")
    for r in range(8): a(f"v_add_f32 v{XB+r}, v{XB+r}, v{XB+8+r}")
    a("s_waitcnt vmcnt(16)\ns_barrier")
    run([(j - 18, HF + 4*j) for j in range(18, 20)])
    a(f"s_cmp_eq_u32 s{sKQ}, 3\ns_cbranch_scc1 {Lsk}_b")
    run([(j - 18, HF + 4*j) for j in range(20, 22)])
    a(f"{Lsk}_b:")
    stamp(a, cfg, 2)
    a("s_waitcnt vmcnt(0)\ns_barrier")
    run([(4 + j, OF + 4*j) for j in range(8)])
    RED = 12 * 8192
    for o in range(1, 4):
        a(f"s_xor_b32 s{T}, s{sWAVE}, {2*o}\ns_mul_i32 s{T}, s{T}, 6144\ns_add_u32 s{T}, s{T}, {RED + (o-1)*2048}\nv_add_u32 v{[t0,t1,t2][o-1]}, s{T}, v{vL16}")
    a(f"s_mul_i32 s{T}, s{sWAVE}, 6144\ns_add_u32 s{T}, s{T}, {RED}\nv_add_u32 v{vWa}, s{T}, v{vL16}\ns_nop 1")
    for o in range(1, 4):
        for q in range(2): a(f"ds_write_b128 v{[t0,t1,t2][o-1]}, {vr(ACC+8*o+4*q,4)} offset:{q*1024}")
    for r in range(8): a(f"v_add_f32 v{ACC+r}, v{ACC+r}, v{XB+r}")
    a("s_waitcnt lgkmcnt(0)\ns_barrier")
    for q in range(6): a(f"ds_read_b128 {vr(OF+4*q,4)}, v{vWa} offset:{q*1024}")
    for o in range(3):
        a(f"s_waitcnt lgkmcnt({4-2*o})")
        for r in range(8): a(f"v_add_f32 v{ACC+r}, v{ACC+r}, v{OF+8*o+r}")
    for r in range(4): a(f"v_cvt_pk_bf16_f32 v{vXr+r}, v{ACC+2*r}, v{ACC+2*r+1}")
    a(f"s_nop 1\nv_permlane32_swap_b32 v{vXr}, v{vXr+2}\nv_permlane32_swap_b32 v{vXr+1}, v{vXr+3}")
    a(f"buffer_store_dwordx4 {vr(vXr,4)}, v{vOut}, s[{sOUT}:{sOUT+3}], 0 offen")
    stamp(a, cfg, 3)
    return R.hi

def header(launches):
    h = "; generated by work/gen/gen.py\n"
    for k, lds in launches:
        h += f"; @launch kernel={k} grid=(256,1,1) block=(512,1,1) lds={lds}\n"
    return h + ".amdgcn_target \"amdgcn-amd-amdhsa--gfx950\"\n.text\n"

def kernel(name, body):
    return f".globl {name}\n.p2align 8\n.type {name},@function\n{name}:\n" + body

def build_k(cfg, name, phase, idx):
    a = Asm(); a.uid = idx * 1000
    prologue(a, cfg, f"L_end{idx}")
    hi = phase(a, cfg)
    if cfg.ts:
        a("s_waitcnt vmcnt(0)")
        stamp(a, cfg, 4)
        stamps_out(a, cfg, 5, idx * 0x10000); tr_out(a, cfg)
    if cfg.trace: hi = 256
    a(f"L_end{idx}:\ns_endpgm")
    return kernel(name, a.text()), hi
def build_p1(cfg): return build_k(cfg, "p1_kernel", phase1, 0)

def build_split(cfg):
    ks = [("p1_kernel", phase1), ("p2_kernel", phase2), ("p3_kernel", phase3)]
    txt = header([(k, 163840) for k, _ in ks]); desc = ""
    for i, (k, ph) in enumerate(ks):
        t, hi = build_k(cfg, k, ph, i)
        txt += t; desc += ".p2align 6\n" + kernel_desc(k, hi)
    return txt + ".section .rodata,\"a\"\n" + desc

if __name__ == "__main__":
    print(build_split(Cfg(**eval(sys.argv[1] if len(sys.argv) > 1 else "{}"))))
```

```python
import sys, struct
from asmlib import *

WS_Q  = 0
WS_KV = 2 << 20
WS_FL = 7 << 20
FQ, FH, FO = WS_FL, WS_FL + 4096, WS_FL + 8192
FL_BYTES = 16384
WS_AH = 8 << 20
WS_TS = 0xF80000
WS_SIZE = 16 << 20
NKS = 118
LOG2E = 1.4426950408889634
def f2u(x): return struct.unpack("<I", struct.pack("<f", x))[0]
NAME = "parallel_sum__softmax_full_mha__dense_activation_gelu__prompt_kernel"

sWG = 2
sX, sW, sWS, sB1, sWO, sOUT, sDBG = 8, 12, 16, 20, 24, 28, 32
sW2, sB2 = sW, sB1
sARG = 36
sWAVE = 58
sRB, sKIND, sNB, sHW = 59, 60, 61, 62
sHEAD, sQB, sQP, sKH = 59, 60, 61, 62
sKQ, sH3, sW3, sM3, sWo3 = 63, 4, 5, 6, 7
sHFL = 3
T = 64
sTS = 86
WSR = f"s[{sWS}:{sWS+3}]"

class Cfg:
    def __init__(self, **kw):
        self.ts = False; self.clk = False; self.rot = 4; self.codepf = True; self.nostats = False
        self.fused = True; self.slow = False; self.pubg = 6; self.opubs = 4; self.hpk = 10; self.plow = 2; self.hprio = 2; self.csv = False; self.w1mode = 1; self.qpk = False; self.names = ['start', 'A_end', 'p2in', 'att0', 'att1', 'opub', 'opoll', 'end']; self.p1sc = 'sc1'; self.qsl = 1; self.osl = 2; self.opw = 6
        self.__dict__.update(kw)

def srd(a, d, lo, size):
    a(f"s_mov_b32 s{d}, s{lo}\ns_mov_b32 s{d+1}, s{lo+1}\ns_mov_b32 s{d+2}, {size:#x}\ns_mov_b32 s{d+3}, 0x20000")
def stamp(a, cfg, name):
    if name not in cfg.names: return
    i = cfg.names.index(name)
    if cfg.ts: a(f"{'s_memtime' if cfg.clk else 's_memrealtime'} s[{sTS+2*i}:{sTS+2*i+1}]")
def stamps_out(a, cfg, n):
    if not cfg.ts: return
    a("s_waitcnt lgkmcnt(0)")
    for i in range(n): a(f"v_writelane_b32 v1, s{sTS+2*i}, {i}")
    a(f"""s_lshl_b32 s{T}, s{sWG}, 3
s_add_u32 s{T}, s{T}, s{sWAVE}
s_lshl_b32 s{T}, s{T}, 5
s_add_u32 s{T}, s{T}, {WS_TS:#x}
v_mbcnt_lo_u32_b32 v2, -1, 0
v_lshlrev_b32 v2, 2, v2
s_mov_b64 exec, 0xff
buffer_store_dword v1, v2, {WSR}, s{T} offen
s_mov_b64 exec, -1""")

def P(r): return vr(r, 2)
vL = 1

def flag_store(a, vtmp, vtmp2, soff):
    a(f"""v_mov_b32 v{vtmp}, 1
v_mov_b32 v{vtmp2}, 0
s_mov_b64 exec, 1
buffer_store_dword v{vtmp}, v{vtmp2}, {WSR}, s{soff} offen sc1
s_mov_b64 exec, -1""")

STG = 28672
NST = 3
W1L = [86016 + 12288 * i for i in range(5)] + [20480 + 12288 * i for i in range(3)]
SCR = 147456
AFM, VSM, LCN, LFR = SCR, 57344, SCR + 3072, SCR + 3088
QST = 19 * 8192
sCB = 60
def phase1(a, cfg, Lp2h, Lp2c, poll_and_stage):
    Lc = a.label("p1c")
    a(f"""s_and_b32 s{T}, s{sWG}, 3
s_lshl_b32 s{T}, s{T}, 2
s_bfe_u32 s{T+1}, s{sWG}, 0x20003
s_add_u32 s{sRB}, s{T}, s{T+1}
s_lshr_b32 s{T+1}, s{sWG}, 5
s_and_b32 s{T}, s{sWG}, 4
s_lshl_b32 s{T}, s{T}, 1
s_add_u32 s{sCB}, s{T}, s{T+1}
s_and_b32 s{sHW}, s{sWAVE}, 3
s_cmp_lt_u32 s{sWAVE}, 4
s_cbranch_scc1 {Lc}""")
    R = Regs(16)
    t0, t1, t2, t3 = R.alloc(), R.alloc(), R.alloc(), R.alloc()
    vXg = [R.alloc(), R.alloc()]
    vWg = [R.alloc() for _ in range(3)]; vW1g = [R.alloc() for _ in range(3)]
    vWa = R.alloc(); vB1 = R.alloc(); vRdy = R.alloc(); vAw = R.alloc(); vZ = R.alloc(); vFr = R.alloc(); vFq = R.alloc(4, 4)
    vOne = R.alloc(2, 2)
    vCs = [R.alloc(4, 4) for _ in range(3)]
    FW = R.alloc(32, 4); AF = R.alloc(4, 4)
    sXoff, sWoff, sM0x, sM0w, sCh, sCnt, sDlt, sStage, sCh0, sW1 = T + 8, T + 9, T + 10, T + 11, T + 12, T + 13, T + 14, T + 15, T + 16, sWO
    a(f"""s_lshl_b32 s{T}, s{sRB}, 1
s_add_u32 s{sCh}, s{T}, s{T+1}
s_and_b32 s{sCh}, s{sCh}, {cfg.rot}
v_lshrrev_b32 v{t0}, 3, v{vL}
v_lshrrev_b32 v{t1}, 4, v{vL}
v_and_b32 v{t2}, 7, v{vL}
v_xor_b32 v{t2}, v{t2}, v{t1}
v_lshlrev_b32 v{t2}, 4, v{t2}
v_lshl_add_u32 v{vXg[0]}, v{t0}, 10, v{t2}
v_xor_b32 v{vXg[1]}, 64, v{vXg[0]}
v_add_u32 v{vXg[1]}, 0x2000, v{vXg[1]}
s_lshl_b32 s{sXoff}, s{sRB}, 17
s_lshl_b32 s{T}, s{sHW}, 15
s_add_u32 s{sXoff}, s{sXoff}, s{T}
s_lshl_b32 s{sM0x}, s{sHW}, 12
s_mov_b32 s{sCh0}, s{sCh}""")
    for i in range(3):
        a(f"""v_add_u32 v{t0}, {64*i}, v{vL}
v_mul_u32_u24 v{t1}, 0x556, v{t0}
v_lshrrev_b32 v{t1}, 14, v{t1}
v_mul_u32_u24 v{t2}, {3072 - 192}, v{t1}
v_lshl_add_u32 v{vWg[i]}, v{t0}, 4, v{t2}
v_mul_u32_u24 v{t2}, {2752 - 192}, v{t1}
v_lshl_add_u32 v{vW1g[i]}, v{t0}, 4, v{t2}""")
    a(f"""s_mul_i32 s{sWoff}, s{sCB}, 192
s_mul_i32 s{T}, s{sHW}, {16*3072}
s_add_u32 s{sWoff}, s{sWoff}, s{T}
s_mul_i32 s{sM0w}, s{sHW}, 3072
s_mov_b32 s{sX+2}, {2048*1024}
s_mov_b32 s{sX+3}, 0x20000
s_mov_b32 s{sW+2}, {512*3072}
s_mov_b32 s{sW+3}, 0x20000
s_mov_b32 s{sStage}, 0
s_mov_b32 s{sCnt}, 0
s_waitcnt lgkmcnt(0)
s_mov_b32 s{sX}, s{sARG}
s_mov_b32 s{sX+1}, s{sARG+1}
s_mov_b32 s{sW}, s{sARG+2}
s_mov_b32 s{sW+1}, s{sARG+3}""")
    def dma_groups():
        g = []
        X = f"s[{sX}:{sX+3}]"; W = f"s[{sW}:{sW+3}]"
        g.append(f"s_lshl_b32 s{T}, s{sCh}, 7\ns_add_u32 s{T}, s{T}, s{sXoff}\ns_add_u32 m0, s{sM0x}, s{sStage}\ns_mul_i32 s{T+1}, s{sCh}, {64*3072}\nbuffer_load_dwordx4 v{vXg[0]}, {X}, s{T} offen lds")
        g.append(f"s_add_u32 m0, m0, 1024\ns_add_u32 s{T+1}, s{T+1}, s{sWoff}\nbuffer_load_dwordx4 v{vXg[1]}, {X}, s{T} offen lds")
        g.append(f"s_add_u32 m0, m0, 1024\ns_add_u32 s{T}, s{T}, 0x4000\nbuffer_load_dwordx4 v{vXg[0]}, {X}, s{T} offen lds")
        g.append(f"s_add_u32 m0, m0, 1024\ns_add_u32 s{T+2}, s{sM0w}, s{sStage}\nbuffer_load_dwordx4 v{vXg[1]}, {X}, s{T} offen lds")
        g.append(f"s_add_u32 m0, s{T+2}, 16384\ns_add_u32 s{sCh}, s{sCh}, 1\nbuffer_load_dwordx4 v{vWg[0]}, {W}, s{T+1} offen lds")
        g.append(f"s_add_u32 m0, m0, 1024\ns_and_b32 s{sCh}, s{sCh}, 7\nbuffer_load_dwordx4 v{vWg[1]}, {W}, s{T+1} offen lds")
        g.append(f"s_add_u32 m0, m0, 1024\ns_nop 0\nbuffer_load_dwordx4 v{vWg[2]}, {W}, s{T+1} offen lds")
        return g
    def w1dma(i):
        W = f"s[{sW1}:{sW1+3}]"
        a(f"""s_add_u32 s{T}, s{sCh0}, {i}
s_and_b32 s{T}, s{T}, 7
s_mul_i32 s{T}, s{T}, {64*2752}
s_add_u32 m0, s{sM0w}, {W1L[i]}
s_add_u32 s{T}, s{T}, s{sWoff}
buffer_load_dwordx4 v{vW1g[0]}, {W}, s{T} offen lds
s_add_u32 m0, m0, 1024
s_nop 0
buffer_load_dwordx4 v{vW1g[1]}, {W}, s{T} offen lds
s_add_u32 m0, m0, 1024
s_nop 0
buffer_load_dwordx4 v{vW1g[2]}, {W}, s{T} offen lds""")
    for g in dma_groups(): a(g)
    srd(a, sB1, sARG + 10, 2752)
    a(f"""s_min_u32 s{T+2}, s{sHW}, 2
s_lshl_b32 s{T+2}, s{T+2}, 6
s_mul_i32 s{T}, s{sCB}, 192
s_add_u32 s{T}, s{T}, s{T+2}
v_and_b32 v{t0}, 31, v{vL}
v_lshlrev_b32 v{t1}, 1, v{t0}
buffer_load_ushort v{vB1}, v{t1}, s[{sB1}:{sB1+3}], s{T} offen
s_lshl_b32 s{T}, s{T+2}, 3
s_add_u32 s{T}, s{T}, {AFM}
v_lshl_add_u32 v{vAw}, v{t0}, 4, s{T}
v_lshrrev_b32 v{t0}, 5, v{vL}
v_bfe_u32 v{t1}, v{vL}, 2, 2
v_lshl_add_u32 v{t0}, v{t0}, 2, v{t1}
v_mul_u32_u24 v{t0}, 192, v{t0}
v_bfe_u32 v{t1}, v{vL}, 4, 1
v_lshl_add_u32 v{t0}, v{t1}, 5, v{t0}
v_and_b32 v{t1}, 3, v{vL}
v_lshl_add_u32 v{t0}, v{t1}, 3, v{t0}
s_add_u32 s{T+2}, s{T+2}, 16384
v_add_u32 v{vWa}, s{T+2}, v{t0}
v_mov_b32 v{vOne}, 0x3f803f80
v_mov_b32 v{vOne+1}, 0x3f803f80
v_mov_b32 v{vZ}, 0""")
    for r in [c+i for c in vCs for i in range(4)]: a(f"v_mov_b32 v{r}, 0")
    srd(a, sWS, sARG + 20, WS_SIZE)
    srd(a, sDBG, sARG + 18, 256)
    srd(a, sW1, sARG + 8, 512 * 2752)
    a(f"s_mov_b32 s{sStage}, {STG}\nv_mov_b32 v{t3}, {LCN}\nds_write_b32 v{t3}, v{vZ}\nds_write_b32 v{t3}, v{vZ} offset:4\nv_mov_b32 v{vFr}, {LFR}")
    if cfg.hprio: a(f"s_setprio {cfg.hprio}")
    for g in dma_groups(): a(g)
    a(f"s_mov_b32 s{sStage}, {2*STG}")
    def rds(off=0, b=0): return [f"ds_read_b64_tr_b16 {vr(FW + 16*b + 2*q,2)}, v{vWa} offset:{off + q*1536}" for q in range(8)]
    def csvalu(b):
        out = []
        for r in range(16):
            lo, hi = vCs[2] + 2 * (r & 1), vCs[2] + 2 * (r & 1) + 1
            out += [f"v_lshlrev_b32 v{lo}, 16, v{FW + 16*b + r}", f"v_and_b32 v{hi}, 0xffff0000, v{FW + 16*b + r}",
                    f"v_add_f32 v{vCs[0] + (r & 1)}, v{vCs[0] + (r & 1)}, v{lo}", f"v_add_f32 v{vCs[1] + (r & 1)}, v{vCs[1] + (r & 1)}, v{hi}"]
        return out
    def m4b(b): return csvalu(b) if cfg.csv else [f"v_mfma_f32_4x4x4_16b_bf16 {vr(vCs[q%3],4)}, {vr(vOne,2)}, {vr(FW + 16*b + 2*q,2)}, {vr(vCs[q%3],4)}" for q in range(8)]
    m4s = m4b(0)
    def af_out(off, bias):
        if cfg.csv: a(f"v_add_f32 v{vCs[0]}, v{vCs[0]}, v{vCs[0]+1}\nv_add_f32 v{vCs[2]}, v{vCs[1]+1}, v{vZ}")
        else: a("s_nop 4")
        a(f"""v_add_f32 v{vCs[0]}, v{vCs[0]}, v{vCs[1]}
v_add_f32 v{vCs[0]}, v{vCs[0]}, v{vCs[2]}
v_mov_b32 v{vCs[0]+1}, v{vCs[0]}
v_mov_b32 v{AF+2}, {'v%d' % vB1 if bias else 0}
v_mov_b32 v{AF+3}, 0
v_permlane32_swap_b32 v{vCs[0]}, v{vCs[0]+1}
v_add_f32 v{vCs[0]}, v{vCs[0]}, v{vCs[0]+1}
v_cvt_pk_bf16_f32 v{AF}, v{vCs[0]}, v{vCs[0]}
v_and_b32 v{t1}, 0xffff0000, v{AF}
v_sub_f32 v{t1}, v{vCs[0]}, v{t1}
v_cvt_pk_bf16_f32 v{t1}, v{t1}, 0
v_lshl_or_b32 v{AF+1}, v{AF+2}, 16, v{t1}
ds_write_b128 v{vAw}, {vr(AF,4)} offset:{off}""")
    Lp = a.label("hloop"); Lw2 = a.label("hw"); Lnd = a.label("hnd"); Lnx = a.label("hnx")
    a(f"""s_waitcnt vmcnt(8)
s_branch {Lw2}_b
.p2align 3
{Lp}:
s_cmp_lt_u32 s{sCnt}, 7
s_cbranch_scc1 {Lw2}
s_waitcnt vmcnt(10)
s_branch {Lw2}_b
{Lw2}:
s_waitcnt vmcnt(7)
{Lw2}_b:
s_barrier
s_cmp_lt_u32 s{sCnt}, 6
s_cbranch_scc0 {Lnd}
s_cmp_eq_u32 s{sCnt}, 0
s_cbranch_scc1 {Lnd}_go
{Lnd}_fr:
ds_read_b128 {vr(vFq,4)}, v{vFr}
s_waitcnt lgkmcnt(0)
v_min_u32 v{vFq}, v{vFq}, v{vFq+1}
v_min3_u32 v{vFq}, v{vFq}, v{vFq+2}, v{vFq+3}
s_nop 0
v_readfirstlane_b32 s{T}, v{vFq}
s_cmp_lt_u32 s{T}, s{sCnt}
s_cbranch_scc1 {Lnd}_fr
{Lnd}_go:""")
    rr = rds()
    for i, g in enumerate(dma_groups()):
        a(g)
        if i < 4:
            for l in rr[2*i:2*i+2]: a(l)
    a(f"s_branch {Lnx}\n{Lnd}:")
    for l in rr: a(l)
    a(f"s_cmp_eq_u32 s{sCnt}, 6\ns_cbranch_scc0 {Lnd}_7")
    a(f"""buffer_load_dword v{vRdy}, v{vZ}, s[{sDBG}:{sDBG+3}], 0 offen sc1
s_mul_i32 s{sWoff}, s{sCB}, 192
s_mul_i32 s{T}, s{sHW}, {16*2752}
s_add_u32 s{sWoff}, s{sWoff}, s{T}""")
    for i in range(3): w1dma(i)
    a(f"s_branch {Lnx}\n{Lnd}_7:")
    if cfg.w1mode == 0:
        for i in range(3, 5): w1dma(i)
    a(f"""{Lnx}:
s_add_u32 s{sCnt}, s{sCnt}, 1
s_add_u32 s{sStage}, s{sStage}, {STG}
s_cmp_eq_u32 s{sStage}, {NST*STG}
s_cselect_b32 s{sStage}, 0, s{sStage}
s_mov_b32 s{sDlt}, {STG}
s_cmp_eq_u32 s{sStage}, {(NST-1)*STG}
s_cmov_b32 s{sDlt}, {(-(NST-1)*STG) & 0xffffffff:#x}
s_waitcnt lgkmcnt(0)""")
    for l in m4s: a(l)
    a(f"v_add_u32 v{vWa}, s{sDlt}, v{vWa}\ns_cmp_lt_u32 s{sCnt}, 8\ns_cbranch_scc1 {Lp}")
    af_out(0, False)
    Lr = a.label("rdy")
    a(f"""s_waitcnt vmcnt({9 if cfg.w1mode == 0 else 3})
{Lr}:
v_readfirstlane_b32 s{T}, v{vRdy}
s_cmp_lg_u32 s{T}, 0
s_cbranch_scc1 {Lr}_ok
s_sleep 1
buffer_load_dword v{vRdy}, v{vZ}, s[{sDBG}:{sDBG+3}], 0 offen sc1
s_waitcnt vmcnt(0)
s_branch {Lr}
{Lr}_ok:
s_waitcnt lgkmcnt(0)
s_barrier""")
    stamp(a, cfg, 'A_end')
    a(f"v_add_u32 v{vWa}, {(W1L[0] - 16384 - 2*STG) & 0xffffffff:#x}, v{vWa}")
    for r in [c+i for c in vCs for i in range(4)]: a(f"v_mov_b32 v{r}, 0")
    def cs(idx, basev):
        L = a.label("cs")
        a(f"s_cmp_eq_u32 s{sWAVE}, 7\ns_cbranch_scc1 {L}")
        for l in rds(W1L[idx[0]] - basev, 0)[:7]: a(l)
        for n, i in enumerate(idx):
            a(rds(W1L[i] - basev, n & 1)[7])
            if n + 1 < len(idx):
                for l in rds(W1L[idx[n+1]] - basev, (n + 1) & 1)[:7]: a(l)
                a("s_waitcnt lgkmcnt(7)")
            else: a("s_waitcnt lgkmcnt(0)")
            for l in m4b(n & 1): a(l)
        a(f"{L}:")
    cs([0, 1], W1L[0])
    if cfg.w1mode == 0:
        for i in range(5, 8): w1dma(i)
        a("s_waitcnt vmcnt(9)"); stamp(a, cfg, 'preB8'); a("s_barrier"); stamp(a, cfg, 'postB8')
        cs([2, 3, 4], W1L[0])
    else:
        for i in range(3, 5): w1dma(i)
        a("s_waitcnt vmcnt(6)\ns_barrier")
        for i in range(5, 8): w1dma(i)
        cs([2], W1L[0])
        a("s_waitcnt vmcnt(9)\ns_barrier")
        cs([3, 4], W1L[0])
    a(f"v_add_u32 v{vWa}, {(W1L[5] - W1L[0]) & 0xffffffff:#x}, v{vWa}")
    poll_and_stage("ids")
    a("s_waitcnt vmcnt(0)"); stamp(a, cfg, 'preB20'); a("s_barrier"); stamp(a, cfg, 'postB20')
    L7 = a.label("h7")
    a(f"s_cmp_eq_u32 s{sWAVE}, 7\ns_cbranch_scc1 {L7}")
    cs([5, 6, 7], W1L[5])
    af_out(1536, True)
    a(f"""v_mov_b32 v{t0}, 1
s_waitcnt lgkmcnt(0)
s_mov_b64 exec, 1
ds_add_u32 v{t3}, v{t0}
s_mov_b64 exec, -1
{L7}:""")
    stamp(a, cfg, 'B_end')
    a(f"s_branch {Lp2h}")
    hi1 = R.hi
    a(f"{Lc}:")
    R = Regs(2)
    t0, t1, t2, t3 = R.alloc(), R.alloc(), R.alloc(), R.alloc()
    assert t2 % 2 == 0
    vXa = [R.alloc() for _ in range(4)]
    vWa = R.alloc(); vL16 = R.alloc(); vVw = R.alloc(); vVr = R.alloc(); vAa = R.alloc(); vDum = R.alloc(); vFr = R.alloc(); vFv = R.alloc()
    vRS = R.alloc(2, 2); vK = R.alloc(2, 2); vOne = R.alloc(2, 2)
    vSt = R.alloc(4, 4); vSq = R.alloc(4, 4); vBF = R.alloc(4, 4); vSt2 = vBF; vSq2 = R.alloc(4, 4)
    FB = R.alloc(36, 4)
    FWc = lambda b, p: FB + 12 * b + 4 * p
    ACC = [R.alloc(16, 4) for _ in range(3)]
    X = R.alloc(128, 4)
    if cfg.codepf:
        a(f"""s_getpc_b64 s[{T}:{T+1}]
s_and_b32 s{T}, s{T}, 0xffffff00
v_lshlrev_b32 v{t0}, 7, v0
global_load_dword v{vDum}, v{t0}, s[{T}:{T+1}]""")
    a(f"v_lshlrev_b32 v{vL16}, 4, v{vL}\ns_waitcnt lgkmcnt(0)")
    srd(a, sWS, sARG + 20, WS_SIZE)
    Lncl = a.label("nclr")
    a(f"""s_or_b32 s{T}, s{sWG}, s{sWAVE}
s_cmp_eq_u32 s{T}, 0
s_cbranch_scc0 {Lncl}""")
    srd(a, sDBG, sARG + 18, 256)
    for r in range(4): a(f"v_mov_b32 v{FB+4+r}, 0")
    a(f"s_mov_b32 s{T}, {WS_FL}")
    for i in range(FL_BYTES // 1024):
        if i % 4 == 0 and i: a(f"s_add_u32 s{T}, s{T}, 4096")
        a(f"buffer_store_dwordx4 {vr(FB+4,4)}, v{vL16}, {WSR}, s{T} offen offset:{(i%4)*1024} sc1")
    a(f"""v_mov_b32 v{t0}, 1
s_waitcnt vmcnt(0)
s_mov_b64 exec, 1
buffer_store_dword v{t0}, v{FB+4}, s[{sDBG}:{sDBG+3}], 0 offen sc1
s_mov_b64 exec, -1
{Lncl}:
v_and_b32 v{t0}, 31, v{vL}
v_lshrrev_b32 v{t1}, 5, v{vL}
v_bfe_u32 v{t2}, v{vL}, 1, 3
v_xor_b32 v{t2}, v{t2}, v{t1}
v_lshlrev_b32 v{t2}, 4, v{t2}
v_lshl_add_u32 v{t2}, v{t0}, 7, v{t2}
s_lshl_b32 s{T}, s{sWAVE}, 12
v_add_u32 v{vXa[0]}, s{T}, v{t2}""")
    for j in range(1, 4): a(f"v_xor_b32 v{vXa[j]}, {32*j}, v{vXa[0]}")
    a(f"""v_lshlrev_b32 v{vAa}, 4, v{t0}
v_add_u32 v{vAa}, {AFM}, v{vAa}
v_lshlrev_b32 v{t0}, 5, v{t0}
v_lshl_add_u32 v{t0}, v{t1}, 3, v{t0}
s_mul_i32 s{T}, s{sWAVE}, 6144
s_add_u32 s{T}, s{T}, {VSM}
v_add_u32 v{vVw}, s{T}, v{t0}
v_lshrrev_b32 v{t0}, 4, v{vL}
v_bfe_u32 v{t2}, v{vL}, 2, 2
v_lshl_add_u32 v{t0}, v{t0}, 3, v{t2}
v_and_b32 v{t3}, 3, v{vL}
v_lshlrev_b32 v{t3}, 3, v{t3}
v_lshl_add_u32 v{t0}, v{t0}, 5, v{t3}
v_add_u32 v{vVr}, s{T}, v{t0}
v_lshl_add_u32 v{t0}, v{t1}, 3, v{t2}
v_mul_u32_u24 v{t0}, 192, v{t0}
v_bfe_u32 v{t1}, v{vL}, 4, 1
v_lshlrev_b32 v{t1}, 5, v{t1}
v_add3_u32 v{vWa}, v{t0}, v{t1}, v{t3}
v_mov_b32 v{vOne}, 0x3f803f80
v_mov_b32 v{vOne+1}, 0x3f803f80""")
    for i in range(4): a(f"v_mov_b32 v{vSt+i}, 0\nv_mov_b32 v{vSq+i}, 0\nv_mov_b32 v{vSt2+i}, 0\nv_mov_b32 v{vSq2+i}, 0")
    a(f"s_lshl_b32 s{T}, s{sWAVE}, 2\ns_add_u32 s{T}, s{T}, {LFR}\nv_mov_b32 v{vFr}, s{T}\nv_mov_b32 v{vFv}, 0\nds_write_b32 v{vFr}, v{vFv}")
    sTT, sQA, sQF, sHA, sHF, sP0 = T + 6, T + 8, T + 14, T + 15, T + 16, T + 7
    a(f"""s_lshl_b32 s{sTT}, s{sRB}, 2
s_add_u32 s{sTT}, s{sTT}, s{sWAVE}
s_mul_i32 s{sP0}, s{sCB}, 3""")
    for p in range(3):
        a(f"""s_add_u32 s{T+2}, s{sP0}, {p}
s_and_b32 s{T+3}, s{T+2}, 15
s_lshl_b32 s{T+3}, s{T+3}, 7
s_add_u32 s{T+3}, s{T+3}, s{sTT}
s_cmp_lt_u32 s{T+2}, 16
s_cselect_b32 s{T+4}, 10, 11
s_cselect_b32 s{T+5}, {WS_Q}, {WS_KV}
s_lshl_b32 s{T+3}, s{T+3}, s{T+4}
s_add_u32 s{T+3}, s{T+3}, s{T+5}
s_lshl_b32 s{T+4}, 64, s{T+4}
s_cmp_ge_u32 s{T+2}, 32
s_cselect_b32 s{T+5}, 1024, 0
s_add_u32 s{sQA+2*p}, s{T+3}, s{T+5}
s_add_u32 s{sQA+2*p+1}, s{sQA+2*p}, s{T+4}""")
    a(f"""s_lshl_b32 s{sQF}, s{sCB}, 6
s_add_u32 s{sQF}, s{sQF}, s{sTT}
s_lshl_b32 s{sQF}, s{sQF}, 2
s_add_u32 s{sQF}, s{sQF}, {FQ}
s_lshl_b32 s{sHF}, s{sTT}, 4
s_add_u32 s{sHF}, s{sHF}, s{sCB}
s_lshl_b32 s{sHF}, s{sHF}, 2
s_add_u32 s{sHF}, s{sHF}, {FH}
s_mul_i32 s{sHA}, s{sTT}, {NKS}
s_mul_i32 s{T}, s{sCB}, 6
s_add_u32 s{sHA}, s{sHA}, s{T}
s_add_u32 s{sHA}, s{sHA}, 32
s_lshl_b32 s{sHA}, s{sHA}, 10
s_add_u32 s{sHA}, s{sHA}, {WS_AH}""")
    wbase = [0]; xbase = [0]
    def reads(g, passA):
        c, ks = g >> 2, g & 3
        b = g % 3
        out = []
        wl = ((c % 3) * STG + 16384 if passA else W1L[c]) + ks * 3072
        if wl - wbase[0] < 0 or wl - wbase[0] + 1024 > 65535:
            nb = (c % 3) * STG if passA else W1L[c]
            out.append(f"v_add_u32 v{vWa}, {(nb - wbase[0]) & 0xffffffff:#x}, v{vWa}"); wbase[0] = nb
        if passA:
            out.append(f"ds_read_b128 {vr(X+4*g,4)}, v{vXa[ks]} offset:{(c % 3) * STG}")
        for p in range(3):
            out.append(f"ds_read_b64_tr_b16 {vr(FWc(b,p),2)}, v{vWa} offset:{wl - wbase[0] + p*64}")
            out.append(f"ds_read_b64_tr_b16 {vr(FWc(b,p)+2,2)}, v{vWa} offset:{wl - wbase[0] + p*64 + 768}")
        return out
    m4 = lambda d, A, B: f"v_mfma_f32_4x4x4_16b_bf16 {vr(d,4)}, {vr(A,2)}, {vr(B,2)}, {vr(d,4)}"
    def burst(gs):
        if cfg.nostats: return
        k = 0
        for g in gs:
            for h in (0, 2):
                x = X + 4 * g + h
                a(m4(vSt if k & 1 else vSt2, vOne, x)); a(m4(vSq if k & 1 else vSq2, x, x)); k += 1
    def gemm(passA, bars, hooks, tail=None):
        nrd = 7 if passA else 6
        for g in (0, 1):
            for l in reads(g, passA): a(l)
        for g in range(32):
            if g in hooks: hooks[g]()
            nxt = []
            extra = 0
            if g + 2 < 32:
                if g + 2 in bars:
                    if passA:
                        a(f"v_mov_b32 v{vFv}, {(g + 2) // 4}\nds_write_b32 v{vFr}, v{vFv}"); extra = 1
                        burst(range(max(0, g - 4), g))
                    stamp(a, cfg, f"pre{'A' if passA else 'B'}{g+2}")
                    a("s_barrier")
                    stamp(a, cfg, f"post{'A' if passA else 'B'}{g+2}")
                nxt = reads(g + 2, passA)
            a(f"s_waitcnt lgkmcnt({nrd + extra if g + 1 < 32 else 0})")
            if passA and g == 31: burst(range(26, 32))
            x = X + 4 * g
            n = len(nxt)
            for p in range(3):
                c = "0" if g == 0 else vr(ACC[p], 16)
                a(f"v_mfma_f32_32x32x16_bf16 {vr(ACC[p],16)}, {vr(FWc(g % 3,p),4)}, {vr(x,4)}, {c}")
                for l in nxt[p*n//3:(p+1)*n//3]: a(l)

    a("s_waitcnt lgkmcnt(0)\ns_barrier")
    gemm(True, {4 * c for c in range(1, 8)}, {})
    vM, vQ2, vSd, vRs = vSq, vSq+1, vRS+1, vRS
    BF = vBF
    a(f"""v_and_b32 v{t0}, 3, v{vL}
v_cmp_eq_u32 vcc, 1, v{t0}
v_cmp_eq_u32 s[{T}:{T+1}], 2, v{t0}
v_cmp_eq_u32 s[{T+2}:{T+3}], 3, v{t0}
v_add_f32 v{vSt}, v{vSt}, v{vSt2}
v_add_f32 v{vSq}, v{vSq}, v{vSq2}
v_add_f32 v{vSq+1}, v{vSq+1}, v{vSq2+1}
v_add_f32 v{vSq+2}, v{vSq+2}, v{vSq2+2}
v_add_f32 v{vSq+3}, v{vSq+3}, v{vSq2+3}
v_cndmask_b32 v{vSt+1}, v{vSq}, v{vSq+1}, vcc
v_cndmask_b32 v{vSt+1}, v{vSt+1}, v{vSq+2}, s[{T}:{T+1}]
v_cndmask_b32 v{vSt+1}, v{vSt+1}, v{vSq+3}, s[{T+2}:{T+3}]
v_mov_b32 v{vSt+2}, v{vSt}
v_mov_b32 v{vSt+3}, v{vSt+1}
v_cmp_gt_u32 vcc, 32, v{vL}
v_mov_b32 v{BF+3}, 0
v_permlane32_swap_b32 v{vSt}, v{vSt+2}
v_permlane32_swap_b32 v{vSt+1}, v{vSt+3}
v_add_f32 v{vM}, v{vSt}, v{vSt+2}
v_add_f32 v{vQ2}, v{vSt+1}, v{vSt+3}
v_mul_f32 v{vM}, {f2u(-1.0/512):#x}, v{vM}
v_mul_f32 v{vQ2}, {f2u(1.0/512):#x}, v{vQ2}
v_fma_f32 v{vQ2}, -v{vM}, v{vM}, v{vQ2}
v_max_f32 v{vQ2}, 0, v{vQ2}
v_add_f32 v{vQ2}, {f2u(1e-5):#x}, v{vQ2}
v_rsq_f32 v{vRs}, v{vQ2}
v_cndmask_b32 v{vM}, 0, v{vM}, vcc
v_mul_f32 v{vSd}, v{vQ2}, v{vRs}
v_cvt_pk_bf16_f32 v{t0}, v{vM}, v{vM}
v_cndmask_b32 v{vQ2}, 0, v{vSd}, vcc
v_and_b32 v{t1}, 0xffff0000, v{t0}
v_sub_f32 v{t1}, v{vM}, v{t1}
v_cvt_pk_bf16_f32 v{BF}, v{vM}, v{t1}
v_cvt_pk_bf16_f32 v{BF+1}, v{vM}, v{vQ2}
v_and_b32 v{t1}, 0xffff0000, v{BF+1}
v_sub_f32 v{t1}, v{vQ2}, v{t1}
v_cvt_pk_bf16_f32 v{BF+2}, v{t1}, 0
v_mul_f32 v{vK}, {f2u(0.25*LOG2E):#x}, v{vRs}
s_barrier""")
    stamp(a, cfg, 'A_end')
    def rank1(off):
        for p in range(3): a(f"ds_read_b128 {vr(FB+4*p,4)}, v{vAa} offset:{off + 512*p}")
        for p in range(3):
            a(f"s_waitcnt lgkmcnt({2-p})")
            a(f"v_mfma_f32_32x32x16_bf16 {vr(ACC[p],16)}, {vr(FB+4*p,4)}, {vr(BF,4)}, {vr(ACC[p],16)}")
    rank1(0)
    a("s_nop 7")
    OB = FB + 12
    Lv = a.label("p1v"); Lq = a.label("p1q")
    a(f"s_cmp_ge_u32 s{sP0}, 32\ns_cbranch_scc1 {Lv}")
    def vwrite(o, off):
        a(f"""ds_write_b64 v{vVw}, {vr(o,2)} offset:{off}
ds_write_b64 v{vVw}, {vr(o+2,2)} offset:{off+16}
ds_write_b64 v{vVw}, {vr(o+4,2)} offset:{off+1024}
ds_write_b64 v{vVw}, {vr(o+6,2)} offset:{off+1040}""")
    def vread(o, off):
        a(f"""ds_read_b64_tr_b16 {vr(o,2)}, v{vVr} offset:{off}
ds_read_b64_tr_b16 {vr(o+2,2)}, v{vVr} offset:{off+128}
ds_read_b64_tr_b16 {vr(o+4,2)}, v{vVr} offset:{off+1024}
ds_read_b64_tr_b16 {vr(o+6,2)}, v{vVr} offset:{off+1152}""")
    def vstore(o, p):
        a(f"""buffer_store_dwordx4 {vr(o,4)}, v{vL16}, {WSR}, s{sQA+2*p} offen sc1
buffer_store_dwordx4 {vr(o+4,4)}, v{vL16}, {WSR}, s{sQA+2*p+1} offen sc1""")
    for p in range(3):
        ac = ACC[p]; o = OB + 8 * p
        a(f"""s_cmp_lt_u32 s{sP0}, {16 - p}
s_cselect_b64 vcc, -1, 0
v_cndmask_b32 v{t2}, v{vRs}, v{vK}, vcc""")
        if cfg.qpk:
            for r in range(0, 16, 2): a(f"v_pk_mul_f32 {P(ac+r)}, {P(ac+r)}, {P(t2)} op_sel_hi:[1,0]")
        else:
            for r in range(16): a(f"v_mul_f32 v{ac+r}, v{ac+r}, v{t2}")
        for r in range(8): a(f"v_cvt_pk_bf16_f32 v{o+r}, v{ac+2*r}, v{ac+2*r+1}")
        if p == 2:
            Lk = a.label("p1k")
            a(f"s_cmp_lt_u32 s{sP0}, 30\ns_cbranch_scc1 {Lk}")
            vwrite(o, 0); a("s_waitcnt lgkmcnt(0)"); vread(o, 0); a("s_waitcnt lgkmcnt(0)")
            a(f"{Lk}:")
        vstore(o, p)
    a(f"s_branch {Lq}\n{Lv}:")
    for p in range(3):
        ac = ACC[p]; o = OB + 8 * p
        for r in range(16): a(f"v_mul_f32 v{ac+r}, v{ac+r}, v{vRS}")
        for r in range(8): a(f"v_cvt_pk_bf16_f32 v{o+r}, v{ac+2*r}, v{ac+2*r+1}")
        if p:
            a("s_waitcnt lgkmcnt(0)"); vread(OB + 8*(p-1), 2048*(p-1))
        vwrite(o, 2048 * p)
    a("s_waitcnt lgkmcnt(4)"); vstore(OB, 0); vstore(OB + 8, 1)
    a("s_waitcnt lgkmcnt(0)"); vread(OB + 16, 4096); a("s_waitcnt lgkmcnt(0)"); vstore(OB + 16, 2)
    a(f"{Lq}:")
    stamp(a, cfg, 'qst')
    def pub():
        a("s_waitcnt vmcnt(0)")
        stamp(a, cfg, 'qdone')
        flag_store(a, t0, t1, sQF)
    gemm(False, {8, 20} if cfg.w1mode == 0 else {8, 12, 20}, {cfg.pubg: pub})
    stamp(a, cfg, 'preBend')
    Lh = a.label("afw")
    a(f"""v_mov_b32 v{t0}, {LCN}
{Lh}:
ds_read_b32 v{t1}, v{t0}""")
    for p in range(3): a(f"ds_read_b128 {vr(FB+4*p,4)}, v{vAa} offset:{1536 + 512*p}")
    a(f"""s_waitcnt lgkmcnt(0)
v_readfirstlane_b32 s{T}, v{t1}
s_cmp_eq_u32 s{T}, 3
s_cbranch_scc0 {Lh}""")
    stamp(a, cfg, 'B_end')
    for p in range(3): a(f"v_mfma_f32_32x32x16_bf16 {vr(ACC[p],16)}, {vr(FB+4*p,4)}, {vr(BF,4)}, {vr(ACC[p],16)}")
    C1 = -2.0 * 0.7978845608028654 * LOG2E
    a(f"""v_mul_f32 v{vK}, {f2u(C1):#x}, v{vRs}
v_mul_f32 v{t0}, v{vRs}, v{vRs}
v_mul_f32 v{vK+1}, {f2u(0.044715):#x}, v{vK}
v_mul_f32 v{vK+1}, v{vK+1}, v{t0}
s_mov_b32 s{sHFL}, s{sHF}
s_nop 5""")
    for p in range(3):
        a(f"s_cmp_ge_u32 s{sP0}, {43 - p}\ns_cbranch_scc1 {Lp2c}")
        ac = ACC[p]; w = FB + 12; kc = P(vK); rs = P(vRS)
        for r in range(0, 16, 2): a(f"v_pk_mul_f32 {P(w+r)}, {P(ac+r)}, {P(ac+r)}")
        for r in range(0, 16, 2): a(f"v_pk_fma_f32 {P(w+r)}, {P(w+r)}, {kc}, {kc} op_sel:[0,1,0] op_sel_hi:[1,1,0]")
        for r in range(0, 16, 2): a(f"v_pk_mul_f32 {P(w+r)}, {P(w+r)}, {P(ac+r)}")
        for r in range(16): a(f"v_exp_f32 v{w+r}, v{w+r}")
        for r in range(0, 16, 2): a(f"v_pk_fma_f32 {P(w+r)}, {P(w+r)}, {rs}, {rs} op_sel:[0,1,1] op_sel_hi:[1,1,1]")
        for r in range(16): a(f"v_rcp_f32 v{w+r}, v{w+r}")
        for r in range(0, 16, 2): a(f"v_pk_mul_f32 {P(ac+r)}, {P(ac+r)}, {P(w+r)}")
        for r in range(8): a(f"v_cvt_pk_bf16_f32 v{ac+r}, v{ac+2*r}, v{ac+2*r+1}")
        if p == 2: a(f"s_add_u32 s{sHA}, s{sHA}, 4096")
        off = 2048 * p if p < 2 else 0
        a(f"buffer_store_dwordx4 {vr(ac,4)}, v{vL16}, {WSR}, s{sHA} offen offset:{off} sc1")
        a(f"buffer_store_dwordx4 {vr(ac+4,4)}, v{vL16}, {WSR}, s{sHA} offen offset:{off+1024} sc1")
    a(f"s_branch {Lp2c}")
    return max(R.hi, hi1)

CMB = 17 * 8192
class PollStage:
    def __init__(self, a, cfg): self.a = a; self.cfg = cfg
    def loads(self):
        a = self.a
        a(f"""buffer_load_dword v10, v8, {WSR}, s{T+17} offen sc1
buffer_load_dword v11, v8, {WSR}, s{T+18} offen sc1
buffer_load_dword v12, v9, {WSR}, s{T+19} offen sc1""")
    def check(self):
        self.a(f"""s_waitcnt vmcnt(0)
v_and_b32 v10, v10, v11
v_and_b32 v10, v10, v12
v_cmp_eq_u32 vcc, 1, v10
s_cmp_eq_u64 vcc, exec""")
    def stage(self):
        a = self.a
        a(f"""s_lshl_b32 s{T}, s{sHEAD}, 6
s_lshl_b32 s{T+1}, s{sQB}, 3
s_add_u32 s{T}, s{T}, s{T+1}
s_lshl_b32 s{T+1}, s{sQP}, 1
s_add_u32 s{T}, s{T}, s{T+1}
s_lshl_b32 s{T}, s{T}, 10
s_lshl_b32 s{T+1}, s{sQP}, 11
s_add_u32 m0, s{T+1}, {QST}
s_lshl_b32 s{T+2}, s{sQP}, 10
buffer_load_dwordx4 v6, {WSR}, s{T} offen sc1 lds
buffer_load_dwordx4 v6, {WSR}, s{T} offen offset:1024 sc1 lds
s_lshl_b32 s{T+3}, s{sHEAD}, 17
s_add_u32 s{T+3}, s{T+3}, s{T+2}
s_add_u32 s{T+3}, s{T+3}, {WS_KV}""")
        for i in range(5):
            for h in range(2):
                a(f"s_add_u32 m0, s{T+2}, {h*65536 + i*4096}\ns_add_u32 s{T}, s{T+3}, {h*65536 + i*4096}")
                a(f"buffer_load_dwordx4 v6, {WSR}, s{T} offen sc1 lds")
    def emit(self, what):
        a = self.a
        if what == "ids":
            a(f"""s_and_b32 s{T}, s{sWG}, 7
s_lshl_b32 s{T}, s{T}, 2
s_bfe_u32 s{T+1}, s{sWG}, 0x20003
s_add_u32 s{sHEAD}, s{T}, s{T+1}
s_lshr_b32 s{sQB}, s{sWG}, 5
s_and_b32 s{sQP}, s{sWAVE}, 3
s_lshr_b32 s{sKH}, s{sWAVE}, 2
v_lshlrev_b32 v6, 4, v{vL}
v_lshlrev_b32 v8, 2, v{vL}
v_and_b32 v9, 28, v8""")
            for ty, dst in ((1, T + 17), (2, T + 18), (0, T + 19)):
                a(f"""s_lshr_b32 s{T}, s{sHEAD}, 1
s_add_u32 s{T}, s{T}, {16*ty}
s_mul_i32 s{T}, s{T}, 86
s_and_b32 s{T}, s{T}, 0xff00
s_add_u32 s{dst}, s{T}, {FQ}""")
            a(f"s_lshl_b32 s{T}, s{sQB}, 5\ns_add_u32 s{T+19}, s{T+19}, s{T}")
        else:
            L = a.label("fin")
            a(f"v_mov_b32 v7, {LCN + 4}\ns_cmp_eq_u32 s{sWAVE}, 7\ns_cbranch_scc0 {L}_l\n{L}:")
            self.loads(); self.check()
            a(f"""s_cbranch_scc1 {L}_ok
s_sleep {self.cfg.qsl}
s_branch {L}
{L}_ok:
ds_write_b32 v7, v10
s_branch {L}_go
{L}_l:
ds_read_b32 v10, v7
s_waitcnt lgkmcnt(0)
v_readfirstlane_b32 s{T}, v10
s_cmp_eq_u32 s{T}, 0
s_cbranch_scc0 {L}_go
s_sleep 1
s_branch {L}_l
{L}_go:""")
            stamp(a, self.cfg, 'seen')
            self.stage()
            stamp(a, self.cfg, 'p2in')

def phase23(a, cfg, Lp2h, Lp2c, PS):
    R = Regs(2)
    t0, t1, t2, t3, vL16, vIdx, vAK, vAV, vW3g, vOut, vPoll, vPa = [R.alloc() for _ in range(12)]
    vWa = R.alloc(); vWa2 = R.alloc(); vRd = [R.alloc() for _ in range(4)]; vPo = R.alloc(); vDum = R.alloc()
    vXr = R.alloc(4, 4); vBr = R.alloc(4, 4); XB = R.alloc(8, 4)
    NH = 13
    HF = R.alloc(4 * NH, 4)
    FW0 = R.alloc(8, 4)
    ACC = R.alloc(32, 4)
    vQ = [R.alloc(4, 4) for _ in range(2)]
    vK = [R.alloc(4, 4) for _ in range(2)]
    vV = [R.alloc(8, 4) for _ in range(2)]
    vS = [R.alloc(16, 4) for _ in range(2)]
    vO = [R.alloc(16, 4) for _ in range(2)]
    FWb = [FW0, vQ[0], vK[0]]
    OF = vO[0]
    sEx, sKVg, sKVl = T + 10, T + 12, T + 13
    sOF, sOA, sOL, sOP, sWoA, sGot, sHP = T + 14, T + 15, T + 16, T + 17, T + 18, T + 19, T + 9
    sRT3, sCT = sHEAD, sQB
    W2R = f"s[{sW2}:{sW2+3}]"; WOR = f"s[{sWO}:{sWO+3}]"
    a(f"{Lp2h}:")
    PS.emit("finish")
    Lcom = a.label("p2com")
    a(f"s_mov_b32 s{sHFL}, 0\ns_branch {Lcom}\n{Lp2c}:")
    stamp(a, cfg, 'p2in')
    a(f"""s_and_b32 s{T}, s{sWG}, 7
s_lshl_b32 s{T}, s{T}, 2
s_bfe_u32 s{T+1}, s{sWG}, 0x20003
s_add_u32 s{sHEAD}, s{T}, s{T+1}
s_lshr_b32 s{sQB}, s{sWG}, 5
s_and_b32 s{sQP}, s{sWAVE}, 3
s_lshr_b32 s{sKH}, s{sWAVE}, 2
v_lshlrev_b32 v{vL16}, 4, v{vL}
{Lcom}:
s_lshl_b32 s{T}, s{sKH}, 16
v_and_b32 v{t0}, 27, v{vL}
v_mov_b32 v{t1}, 0x3f803f80
v_cmp_eq_u32 vcc, 16, v{t0}
v_add_u32 v{vAK}, s{T}, v{vL16}
v_lshrrev_b32 v{t2}, 5, v{vL}
v_cndmask_b32 v{t0}, 0, v{t1}, vcc
v_lshlrev_b32 v{t2}, 8, v{t2}
v_and_b32 v{t1}, 15, v{vL}
v_lshlrev_b32 v{t1}, 4, v{t1}
v_add3_u32 v{vAV}, v{t2}, v{t1}, s{T}
s_mov_b32 s{sEx}, 0x0000ffff
s_mov_b32 s{sEx+1}, 0x0000ffff
s_lshl_b32 s{T+1}, s{sQP}, 11
s_add_u32 s{T+1}, s{T+1}, {QST}
v_add_u32 v{t2}, s{T+1}, v{vL16}""")
    for r in range(8): a(f"v_mov_b32 v{vV[0]+r}, v{t0}")
    LA = a.label("barA")
    a(f"s_cmp_lt_u32 s{sWAVE}, 4\ns_cbranch_scc1 {LA}\ns_waitcnt vmcnt(0)\n{LA}:\ns_waitcnt lgkmcnt(0)\ns_barrier")
    stamp(a, cfg, 'att0')

    vmq = []
    def vm(tag, cond=False): vmq.append((tag, cond))
    def vmwait(tags):
        idx = max(i for i, (t, c) in enumerate(vmq) if t in tags)
        n = sum(1 for t, c in vmq[idx+1:] if not c)
        assert n < 64
        return f"s_waitcnt vmcnt({n})"
    slot_of = {}
    def w2dma(j, slot):
        def f():
            slot_of[j] = slot; vm(f"w{j}")
            a(f"s_add_u32 m0, s{sM3}, {slot*8192}\ns_add_u32 s{T}, s{sW3}, {j*16384}")
            a(f"buffer_load_dwordx4 v{vW3g}, {W2R}, s{T} offen lds")
        return f
    def wodma(i, slot):
        def f():
            slot_of[100 + i] = slot; vm(f"o{i}")
            a(f"s_add_u32 m0, s{sM3}, {slot*8192}\ns_add_u32 s{T}, s{sWoA}, {i*16384}")
            a(f"buffer_load_dwordx4 v{vW3g}, {WOR}, s{T} offen lds")
        return f
    def kvdma(i):
        def f():
            vm(f"kv{i}")
            a(f"s_add_u32 m0, s{sKVl}, {i*4096}\ns_add_u32 s{T}, s{sKVg}, {i*4096}")
            a(f"buffer_load_dwordx4 v{vL16}, {WSR}, s{T} offen sc1 lds")
        return f
    def hload(j):
        def f():
            L = None
            if j >= 20:
                L = a.label("hs"); a(f"s_cmp_eq_u32 s{sKQ}, 3\ns_cbranch_scc1 {L}")
            vm(f"h{j}", j >= 20)
            a(f"s_add_u32 s{T}, s{sH3}, {j*1024}")
            a(f"buffer_load_dwordx4 {vr(HF+4*(j % NH),4)}, v{vL16}, {WSR}, s{T} offen sc1")
            if L: a(f"{L}:")
        return f
    def txt(t): return lambda: a(t)
    base = [0]
    def rdW(b, slot):
        off = slot * 8192 - base[0]
        if off < 0 or off + 1024 > 65535:
            nb = (slot // 8) * 65536
            d = nb - base[0]
            a(f"v_add_u32 v{vWa}, {d & 0xffffffff:#x}, v{vWa}\nv_add_u32 v{vWa2}, {d & 0xffffffff:#x}, v{vWa2}")
            base[0] = nb; off = slot * 8192 - nb
        a(f"ds_read_b64_tr_b16 {vr(FWb[b],2)}, v{vWa} offset:{off}")
        a(f"ds_read_b64_tr_b16 {vr(FWb[b]+2,2)}, v{vWa} offset:{off+1024}")
        a(f"ds_read_b64_tr_b16 {vr(FWb[b]+4,2)}, v{vWa2} offset:{off}")
        a(f"ds_read_b64_tr_b16 {vr(FWb[b]+6,2)}, v{vWa2} offset:{off+1024}")
    first = [True, True]
    def mm1(b, frag, p):
        c = "0" if first[p] else vr(ACC+16*p, 16)
        first[p] = False
        a(f"v_mfma_f32_32x32x16_bf16 {vr(ACC+16*p,16)}, {vr(FWb[b]+4*p,4)}, {vr(frag,4)}, {c}")
    def run(steps, pre=True, vmo=False, hooks={}):
        n = len(steps)
        if pre:
            rdW(0, steps[0][0])
            if n > 1: rdW(1, steps[1][0])
        for i in range(n):
            if i in hooks: hooks[i]()
            if i + 2 < n: rdW((i + 2) % 3, steps[i + 2][0])
            a(f"s_waitcnt {f'vmcnt({n-1-i}) ' if vmo else ''}lgkmcnt({4 * min(2, n - 1 - i)})")
            mm1(i % 3, steps[i][1], 0); mm1(i % 3, steps[i][1], 1)
    def hs(js): return [(slot_of[j], HF + 4*(j % NH)) for j in js]

    ch = {}
    def put(kt, ph, f): ch.setdefault((kt, ph), []).append(f)
    def seq(kt, fs, per=1, ph=0):
        p = 2 * kt + ph
        for i, f in enumerate(fs): put((p + i // per) // 2, (p + i // per) & 1, f)
    def srdt(d, lo, size): return txt(f"s_mov_b32 s{d}, s{lo}\ns_mov_b32 s{d+1}, s{lo+1}\ns_mov_b32 s{d+2}, {size:#x}\ns_mov_b32 s{d+3}, 0x20000")
    put(0, 0, txt(f"""s_lshl_b32 s{T}, s{sKH}, 16
s_lshl_b32 s{sKVl}, s{sQP}, 10
s_add_u32 s{sKVl}, s{sKVl}, s{T}
s_lshl_b32 s{sKVg}, s{sHEAD}, 17
s_add_u32 s{sKVg}, s{sKVg}, s{sKVl}
s_add_u32 s{sKVg}, s{sKVg}, {WS_KV}"""))
    seq(0, [kvdma(i) for i in range(5, 9)], ph=1)
    seq(1, [srdt(sW2, sARG + 12, 1376 * 1024), srdt(sX, sARG, 2048 * 1024), srdt(sB2, sARG + 14, 1024), srdt(sWO, sARG + 4, 512 * 1024), srdt(sOUT, sARG + 16, 2048 * 1024)])
    put(3, 0, txt(f"""s_lshr_b32 s{sKQ}, s{sWAVE}, 1
s_and_b32 s{T+4}, s{sWAVE}, 1
s_lshl_b32 s{T+2}, s{sRT3}, 1
s_add_u32 s{T+2}, s{T+2}, s{T+4}
s_mul_i32 s{T+1}, s{sKQ}, 22
s_mul_i32 s{sH3}, s{T+2}, {NKS}
s_lshl_b32 s{sOL}, s{sKQ}, 3
s_add_u32 s{sOL}, s{sOL}, s{sH3}
s_lshl_b32 s{sOL}, s{sOL}, 10
s_add_u32 s{sOL}, s{sOL}, {WS_AH}
s_add_u32 s{sH3}, s{sH3}, s{T+1}
s_add_u32 s{sH3}, s{sH3}, 32
s_lshl_b32 s{sH3}, s{sH3}, 10
s_add_u32 s{sH3}, s{sH3}, {WS_AH}
s_lshl_b32 s{sW3}, s{T+1}, 14
s_lshl_b32 s{T+3}, s{T+4}, 13
s_lshl_b32 s{sWo3}, s{sCT}, 7
s_add_u32 s{sWo3}, s{sWo3}, s{T+3}
s_add_u32 s{sW3}, s{sW3}, s{sWo3}
s_lshl_b32 s{sM3}, s{sWAVE}, 10
s_lshl_b32 s{sWoA}, s{sKQ}, 17
s_add_u32 s{sWoA}, s{sWoA}, s{sWo3}
s_lshl_b32 s{sHP}, s{T+2}, 6
s_add_u32 s{sHP}, s{sHP}, {FH}
s_lshl_b32 s{sOP}, s{sRT3}, 8
s_lshl_b32 s{T}, s{sKQ}, 5
s_add_u32 s{sOP}, s{sOP}, {FO}
s_lshl_b32 s{T+5}, s{T+2}, 15
s_lshl_b32 s{T+4}, s{sCT}, 7
s_add_u32 s{T+4}, s{T+4}, s{T}"""))
    put(3, 1, txt(f"""v_lshrrev_b32 v{t0}, 3, v{vL}
v_and_b32 v{t1}, 7, v{vL}
v_bfe_u32 v{t3}, v{vL}, 4, 1
v_lshlrev_b32 v{t3}, 2, v{t3}
v_xor_b32 v{t1}, v{t1}, v{t3}
v_lshlrev_b32 v{t1}, 4, v{t1}
v_lshl_add_u32 v{vW3g}, v{t0}, 10, v{t1}"""))
    def hflag():
        L = a.label("hf")
        a(f"s_cmp_eq_u32 s{sHFL}, 0\ns_cbranch_scc1 {L}\ns_waitcnt vmcnt(4)")
        flag_store(a, t0, t1, sHFL); vm("hflag", True)
        a(f"{L}:")
    put(4, 0, hflag)
    put(4, 1, w2dma(0, 16))
    def xb():
        a(f"""v_and_b32 v{t0}, 31, v{vL}
v_lshrrev_b32 v{t1}, 5, v{vL}
v_lshl_add_u32 v{t1}, v{t1}, 4, s{T+4}
v_lshl_add_u32 v{vOut}, v{t0}, 10, v{t1}
v_add_u32 v{vOut}, s{T+5}, v{vOut}
buffer_load_dwordx4 {vr(vBr,4)}, v{t1}, s[{sB2}:{sB2+3}], 0 offen
buffer_load_dwordx4 {vr(vXr,4)}, v{vOut}, s[{sX}:{sX+3}], 0 offen"""); vm("b2"); vm("x")
    put(5, 0, xb)
    put(6, 0, txt(f"""v_lshrrev_b32 v{t0}, 5, v{vL}
v_bfe_u32 v{t1}, v{vL}, 2, 2
v_lshl_add_u32 v{t0}, v{t0}, 2, v{t1}
v_lshlrev_b32 v{t0}, 7, v{t0}
v_bfe_u32 v{t1}, v{vL}, 3, 1
v_bfe_u32 v{t2}, v{vL}, 4, 1
v_lshl_add_u32 v{t1}, v{t1}, 1, v{t2}"""))
    put(6, 1, txt(f"""v_xor_b32 v{t1}, s{sKQ}, v{t1}
v_and_b32 v{t2}, 3, v{vL}
v_lshlrev_b32 v{t2}, 3, v{t2}
v_lshl_add_u32 v{t1}, v{t1}, 5, v{t2}
s_lshl_b32 s{T+4}, s{sKQ}, 11
v_add3_u32 v{vWa}, v{t0}, v{t1}, s{T+4}
v_xor_b32 v{vWa2}, 64, v{vWa}
v_and_b32 v{vPa}, 15, v{vL}
v_lshlrev_b32 v{vPa}, 2, v{vPa}
v_lshlrev_b32 v{vPo}, 2, v{vL}"""))
    seq(8, [kvdma(i) for i in range(9, 13)])
    def hpoll(): vm("hp"); a(f"buffer_load_dword v{vPoll}, v{vPa}, {WSR}, s{sHP} offen sc1")
    put(cfg.hpk, 0, hpoll)
    seq(10, [w2dma(j, sl) for j, sl in zip(range(1, 5), (0, 1, 8, 9))])
    def hcheck():
        Lh = a.label("pollh")
        a(f"""{vmwait(['hp'])}
{Lh}:
v_cmp_eq_u32 vcc, 1, v{vPoll}
s_cmp_eq_u64 vcc, exec
s_cbranch_scc1 {Lh}_ok
s_sleep 2
buffer_load_dword v{vPoll}, v{vPa}, {WSR}, s{sHP} offen sc1
s_waitcnt vmcnt(0)
s_branch {Lh}
{Lh}_ok:""")
    put(cfg.hpk + 2, 0, hcheck)
    seq(cfg.hpk + 2, [hload(j) for j in range(0, 5)], ph=1)
    def xbfin(r0):
        def f():
            if r0 == 0:
                a(vmwait(['x']))
                for v in (vXr, vBr): a(f"v_permlane32_swap_b32 v{v}, v{v+2}\nv_permlane32_swap_b32 v{v+1}, v{v+3}")
            for r in (r0, r0 + 1):
                a(f"""v_lshlrev_b32 v{XB+2*r}, 16, v{vXr+r}
v_and_b32 v{XB+2*r+1}, 0xffff0000, v{vXr+r}
v_lshlrev_b32 v{t0}, 16, v{vBr+r}
v_and_b32 v{t1}, 0xffff0000, v{vBr+r}
v_add_f32 v{XB+2*r}, v{XB+2*r}, v{t0}
v_add_f32 v{XB+2*r+1}, v{XB+2*r+1}, v{t1}""")
        return f
    put(12, 0, xbfin(0)); put(13, 0, xbfin(2))
    REDB = lambda d: None
    put(14, 0, txt(f"""s_mul_i32 s{T}, s{sWAVE}, 3072
s_add_u32 s{T}, s{T}, {CMB}
v_add_u32 v{vXr}, s{T}, v{vL16}
s_xor_b32 s{T}, s{sWAVE}, 4
s_mul_i32 s{T}, s{T}, 3072
s_add_u32 s{T}, s{T}, {CMB}
v_add_u32 v{vXr+1}, s{T}, v{vL16}
s_lshl_b32 s{sOF}, s{sQB}, 3
s_lshl_b32 s{T+1}, s{sQP}, 1
s_add_u32 s{sOF}, s{sOF}, s{T+1}
s_add_u32 s{sOF}, s{sOF}, s{sKH}
s_mul_i32 s{sOA}, s{sOF}, {NKS}
s_add_u32 s{sOA}, s{sOA}, s{sHEAD}
s_lshl_b32 s{sOA}, s{sOA}, 10
s_add_u32 s{sOA}, s{sOA}, {WS_AH}
s_lshl_b32 s{sOF}, s{sOF}, 5
s_add_u32 s{sOF}, s{sOF}, s{sHEAD}
s_lshl_b32 s{sOF}, s{sOF}, 2
s_add_u32 s{sOF}, s{sOF}, {FO}"""))
    for o in range(4):
        put(15 + (o >> 1) * 6, o & 1, txt(f"""s_xor_b32 s{T}, s{sWAVE}, {2*o}
s_and_b32 s{T+1}, s{T}, 1
s_mul_i32 s{T+1}, s{T+1}, 6144
s_and_b32 s{T+2}, s{T}, 2
s_and_b32 s{T}, s{T}, 4
s_lshl_b32 s{T}, s{T}, 1
s_add_u32 s{T}, s{T}, s{T+2}
s_lshl_b32 s{T}, s{T}, 13
s_add_u32 s{T}, s{T}, s{T+1}
s_add_u32 s{T}, s{T}, {max(o-1,0)*2048}
v_add_u32 v{vRd[o]}, s{T}, v{vL16}"""))
    seq(16, [kvdma(i) for i in range(13, 16)])
    seq(17, [w2dma(j, sl) for j, sl in zip(range(5, 9), (2, 3, 10, 11))], ph=1)
    seq(19, [hload(j) for j in range(5, 13)], ph=1)
    def warm():
        a(f"""v_and_b32 v{t0}, 7, v{vL}
v_lshlrev_b32 v{t0}, 10, v{t0}
v_lshrrev_b32 v{t1}, 3, v{vL}
v_lshl_add_u32 v{t0}, v{t1}, 14, v{t0}
buffer_load_dword v{vDum}, v{t0}, {WOR}, s{sWoA} offen"""); vm("warm")
    put(22, 0, warm)
    seq(24, [w2dma(j, sl) for j, sl in zip(range(9, 18), (4, 5, 12, 13, 16, 0, 1, 8, 9))], per=2)
    seq(26, [hload(j) for j in range(13, 18)], per=2, ph=1)
    seq(28, [w2dma(j, sl) for j, sl in zip(range(18, 22), (2, 3, 10, 11))] + [wodma(0, 14), wodma(1, 6)], per=2)
    seq(29, [hload(j) for j in range(18, 22)], ph=1)
    ffn = {16 + i: i for i in range(5)}; ffn.update({24 + i: 5 + i for i in range(8)})
    bars = {8: ["kv8", "w0"], 16: ["kv12", "w4"], 24: ["kv15", "w8"], 28: ["w17"]}
    lowp = {b - cfg.plow for b in bars} | {32 - cfg.plow}

    kb = [0]
    def koff(t):
        return t * 2048
    def rdK(b, t): a(f"ds_read_b128 {vr(vK[b],4)}, v{vAK} offset:{min(t, 31)*2048}")
    def rdV(b, t):
        t = min(t, 31)
        a(f"s_mov_b64 exec, s[{sEx}:{sEx+1}]")
        a(f"ds_read_b128 {vr(vV[b],4)}, v{vAV} offset:{t*2048+1024}")
        a(f"ds_read_b128 {vr(vV[b]+4,4)}, v{vAV} offset:{t*2048+1024+512}")
        a(f"s_mov_b64 exec, -1")
    def QK(sb, kb, j): a(f"v_mfma_f32_32x32x16_bf16 {vr(vS[sb],16)}, {vr(vK[kb],4)}, {vr(vQ[j],4)}, 0")
    def PV(j, vb, half, sb): a(f"v_smfmac_f32_32x32x32_bf16 {vr(vO[j],16)}, {vr(vV[vb]+4*half,4)}, {vr(vS[sb]+8*half,8)}, v{vIdx}")
    def E(sb, lo, hi):
        for r in range(lo, hi): a(f"v_exp_f32 v{vS[sb]+r}, v{vS[sb]+r}")
    a(f"ds_read_b128 {vr(vQ[0],4)}, v{t2}")
    rdK(0, 0)
    a(f"ds_read_b128 {vr(vQ[1],4)}, v{t2} offset:1024")
    rdV(0, 0); rdK(1, 1)
    a(f"s_setprio 3\nv_mov_b32 v{vIdx}, 0xdddddddd")
    for r in range(8): a(f"v_mov_b32 v{vV[1]+r}, v{t0}")
    a("s_waitcnt lgkmcnt(4)")
    QK(0, 0, 0)
    for j in range(2):
        for r in range(16): a(f"v_mov_b32 v{vO[j]+r}, 0")
    a("s_waitcnt lgkmcnt(0)\n.p2align 3")
    for kt in range(32):
        c = kt & 1; p = c ^ 1
        if kt in bars:
            a(vmwait(bars[kt])); stamp(a, cfg, f'pre{kt}'); a("s_barrier\ns_setprio 3"); stamp(a, cfg, f'post{kt}')
        if kt in lowp: a("s_setprio 2")
        fj = ffn.get(kt)
        E(0, 0, 2)
        if kt: PV(1, p, 1, 1)
        E(0, 2, 4)
        QK(1, c, 1)
        if kt < 31: rdV(p, kt + 1)
        if fj is not None: rdW(0, slot_of[fj])
        E(0, 4, 7)
        for f in ch.pop((kt, 0), []): f()
        E(0, 7, 10)
        PV(0, c, 0, 0); E(0, 10, 16)
        E(1, 0, 2); PV(0, c, 1, 0); E(1, 2, 4)
        a("s_waitcnt lgkmcnt(0)")
        if kt < 31: QK(0, p, 0)
        if kt < 30: rdK(c, kt + 2)
        E(1, 4, 7)
        if fj is not None:
            a(vmwait([f"h{fj}"])); mm1(0, HF + 4 * (fj % NH), 0)
        for f in ch.pop((kt, 1), []): f()
        E(1, 7, 10); PV(1, c, 0, 1); E(1, 10, 13)
        if fj is not None: mm1(0, HF + 4 * (fj % NH), 1)
        E(1, 13, 16)
    assert not ch, ch.keys()
    a(f"s_setprio 0\ns_cmp_eq_u32 s{sKH}, 0")
    PV(1, 1, 1, 1)
    a(f"s_cselect_b64 vcc, -1, 0\ns_nop 10")
    stamp(a, cfg, 'att1')
    snd = vS[0]; kp = vS[1]
    for r in range(9): a(f"v_cndmask_b32 v{snd+r}, v{vO[0]+r}, v{vO[1]+r}, vcc")
    for q in range(3): a(f"ds_write_b128 v{vXr}, {vr(snd+4*q,4)} offset:{q*1024}")
    for r in range(9): a(f"v_cndmask_b32 v{kp+r}, v{vO[1]+r}, v{vO[0]+r}, vcc")
    a("s_waitcnt vmcnt(0) lgkmcnt(0)"); stamp(a, cfg, 'precmb'); a("s_barrier"); stamp(a, cfg, 'cmb')
    for q in range(3): a(f"ds_read_b128 {vr(snd+4*q,4)}, v{vXr+1} offset:{q*1024}")
    st1 = hs([14, 15, 18, 19, 16, 17, 13])
    rdW(0, st1[0][0]); rdW(1, st1[1][0])
    a(f"""s_waitcnt lgkmcnt(8)
v_add_f32 v{kp+8}, v{kp+8}, v{snd+8}
v_rcp_f32 v{t0}, v{kp+8}""")
    for r in range(8): a(f"v_add_f32 v{kp+r}, v{kp+r}, v{snd+r}")
    for r in range(8): a(f"v_mul_f32 v{kp+r}, v{kp+r}, v{t0}")
    for r in range(4): a(f"v_cvt_pk_bf16_f32 v{snd+r}, v{kp+2*r}, v{kp+2*r+1}")
    a(f"buffer_store_dwordx4 {vr(snd,4)}, v{vL16}, {WSR}, s{sOA} offen sc1")
    stamp(a, cfg, 'ost')
    for i, sl in zip(range(2, 8), (7, 4, 5, 15, 12, 13)): wodma(i, sl)()
    def poll(): a(f"buffer_load_dword v{vPoll}, v{vPo}, {WSR}, s{sOP} offen sc1")
    def oloads():
        for j in range(8):
            if j == 4: a(f"s_add_u32 s{sOL}, s{sOL}, 4096")
            a(f"buffer_load_dwordx4 {vr(OF+4*j,4)}, v{vL16}, {WSR}, s{sOL} offen offset:{(j%4)*1024} sc1")
    def opub():
        a("s_waitcnt vmcnt(6)")
        flag_store(a, t0, t1, sOF)
        stamp(a, cfg, 'opub')
    run(st1, pre=False, hooks={cfg.opubs: opub})
    Lsk = a.label("p3sk"); Lo = a.label("pollo")
    d = 65536 - base[0]
    a(f"v_add_u32 v{vWa}, {d & 0xffffffff:#x}, v{vWa}\nv_add_u32 v{vWa2}, {d & 0xffffffff:#x}, v{vWa2}"); base[0] = 65536
    a(f"s_cmp_eq_u32 s{sKQ}, 3\ns_cbranch_scc1 {Lsk}")
    run(hs([20, 21]))
    assert base[0] == 65536
    a(f"{Lsk}:"); stamp(a, cfg, 'ffn2')
    a(f"""s_cmp_eq_u32 s{sWAVE}, {cfg.opw}
s_cbranch_scc0 {Lo}_ok
{Lo}:""")
    poll()
    a(f"""s_waitcnt vmcnt(0)
v_cmp_eq_u32 vcc, 1, v{vPoll}
s_cmp_eq_u64 vcc, exec
s_cbranch_scc1 {Lo}_ok
s_sleep {cfg.osl}
s_branch {Lo}
{Lo}_ok:
s_waitcnt vmcnt(1)""")
    stamp(a, cfg, 'opoll')
    a("s_barrier"); stamp(a, cfg, 'B3')
    oloads()
    run([(slot_of[100 + i], OF + 4*i) for i in range(8)], vmo=True)
    a("s_nop 11"); stamp(a, cfg, 'wo')
    for o in range(1, 4):
        for q in range(2): a(f"ds_write_b128 v{vRd[o]}, {vr(ACC+8*o+4*q,4)} offset:{q*1024}")
    for r in range(8): a(f"v_add_f32 v{ACC+r}, v{ACC+r}, v{XB+r}")
    a("s_waitcnt lgkmcnt(0)\ns_barrier")
    RB = vS[0]
    for q in range(6): a(f"ds_read_b128 {vr(RB+4*q,4)}, v{vRd[0]} offset:{q*1024}")
    for o in range(3):
        a(f"s_waitcnt lgkmcnt({4-2*o})")
        for r in range(8): a(f"v_add_f32 v{ACC+r}, v{ACC+r}, v{RB+8*o+r}")
    for r in range(4): a(f"v_cvt_pk_bf16_f32 v{vXr+r}, v{ACC+2*r}, v{ACC+2*r+1}")
    a(f"s_nop 1\nv_permlane32_swap_b32 v{vXr}, v{vXr+2}\nv_permlane32_swap_b32 v{vXr+1}, v{vXr+3}")
    a(f"buffer_store_dwordx4 {vr(vXr,4)}, v{vOut}, s[{sOUT}:{sOUT+3}], 0 offen"); stamp(a, cfg, 'fst')
    return R.hi

def build_fused(cfg):
    a = Asm()
    a(f"""s_cmp_ge_u32 s{sWG}, 256
s_cbranch_scc1 L_end
s_load_dwordx16 s[{sARG}:{sARG+15}], s[0:1], 0
s_load_dwordx4 s[{sARG+16}:{sARG+19}], s[0:1], 64
s_load_dwordx2 s[{sARG+20}:{sARG+21}], s[0:1], 80""")
    if cfg.ts:
        for i in range(16): a(f"s_mov_b32 s{sTS+i}, 0")
    stamp(a, cfg, 'start')
    a(f"""v_lshrrev_b32 v2, 6, v0
v_and_b32 v1, 63, v0
v_readfirstlane_b32 s{sWAVE}, v2""")
    PS = PollStage(a, cfg)
    h1 = phase1(a, cfg, "L_p2h", "L_p2c", PS.emit)
    h2 = phase23(a, cfg, "L_p2h", "L_p2c", PS)
    if cfg.ts:
        a("s_waitcnt vmcnt(0)")
        stamp(a, cfg, 'end')
        stamps_out(a, cfg, 8)
    a("L_end:\ns_endpgm")
    hi = max(h1, h2)
    hdr = open("cdna_kernels/" + NAME[:-7] + ".s.ref").read().split("; Override launch")[0] if not cfg.ts else ""
    if cfg.ts: launch = f"; @launch kernel={NAME} grid=(256,1,1) block=(512,1,1) lds=163840\n"
    else: launch = "; @launch grid=(256,1,1) block=(512,1,1) lds=163840\n"
    pad = ".fill 8192, 4, 0xbf800000\n"
    txt = hdr + launch + ".amdgcn_target \"amdgcn-amd-amdhsa--gfx950\"\n.text\n" + f".globl {NAME}\n.p2align 8\n.type {NAME},@function\n{NAME}:\n" + a.text() + pad
    return txt + ".section .rodata,\"a\"\n.p2align 6\n" + kernel_desc(NAME, hi)

if __name__ == "__main__":
    print(build_fused(Cfg(**eval(sys.argv[1] if len(sys.argv) > 1 else "{}"))))
```

```python
import sys, struct
from asmlib import *

WS_Q  = 0
WS_KV = 2 << 20
WS_FL = 7 << 20
FQ, FH, FO = WS_FL, WS_FL + 4096, WS_FL + 8192
FL_BYTES = 16384
WS_AH = 8 << 20
WS_TS = 0xF80000
WS_SIZE = 16 << 20
NKS = 118
LOG2E = 1.4426950408889634
def f2u(x): return struct.unpack("<I", struct.pack("<f", x))[0]
NAME = "parallel_sum__softmax_full_mha__dense_activation_gelu__prompt_kernel"

sWG = 2
sX, sW, sWS, sB1, sWO, sOUT, sDBG = 8, 12, 16, 20, 24, 28, 32
sW2, sB2 = sW, sB1
sARG = 36
sWAVE = 58
sRB, sKIND, sNB, sHW = 59, 60, 61, 62
sHEAD, sQB, sQP, sKH = 59, 60, 61, 62
sKQ, sH3, sW3, sM3, sWo3 = 63, 4, 5, 6, 7
sHFL = 3
T = 64
sTS = 86
WSR = f"s[{sWS}:{sWS+3}]"

class Cfg:
    def __init__(self, **kw):
        self.ts = False; self.clk = False; self.rot = 4; self.codepf = True; self.nostats = False
        self.fused = True; self.slow = False; self.pubg = 6; self.opubs = 4; self.hpk = 10; self.w1pf = 0; self.nocs = False; self.m16 = False; self.nofree = False; self.outsc = ''; self.plow = 2; self.hprio = 2; self.csv = False; self.w1mode = 1; self.qpk = False; self.names = ['start', 'A_end', 'p2in', 'att0', 'att1', 'opub', 'opoll', 'end']; self.p1sc = 'sc1'; self.qsl = 1; self.osl = 4; self.opw = 6
        self.__dict__.update(kw)

def srd(a, d, lo, size):
    a(f"s_mov_b32 s{d}, s{lo}\ns_mov_b32 s{d+1}, s{lo+1}\ns_mov_b32 s{d+2}, {size:#x}\ns_mov_b32 s{d+3}, 0x20000")
def stamp(a, cfg, name):
    if name not in cfg.names: return
    i = cfg.names.index(name)
    if cfg.ts: a(f"{'s_memtime' if cfg.clk else 's_memrealtime'} s[{sTS+2*i}:{sTS+2*i+1}]")
def cstamp(a, cfg, name, sreg, val):
    if name not in cfg.names or not cfg.ts: return
    L = a.label("cs_")
    a(f"s_cmp_eq_u32 s{sreg}, {val}\ns_cbranch_scc0 {L}")
    stamp(a, cfg, name)
    a(f"{L}:")
def stamps_out(a, cfg, n):
    if not cfg.ts: return
    a("s_waitcnt lgkmcnt(0)")
    for i in range(n): a(f"v_writelane_b32 v1, s{sTS+2*i}, {i}")
    a(f"""s_lshl_b32 s{T}, s{sWG}, 3
s_add_u32 s{T}, s{T}, s{sWAVE}
s_lshl_b32 s{T}, s{T}, 5
s_add_u32 s{T}, s{T}, {WS_TS:#x}
v_mbcnt_lo_u32_b32 v2, -1, 0
v_lshlrev_b32 v2, 2, v2
s_mov_b64 exec, 0xff
buffer_store_dword v1, v2, {WSR}, s{T} offen
s_mov_b64 exec, -1""")

def P(r): return vr(r, 2)
vL = 1

def sp_ones(a, vA, vI, tmp):
    a(f"""v_and_b32 v{tmp}, 2, v{vL}
v_cmp_eq_u32 vcc, 0, v{tmp}
v_mov_b32 v{vI}, 0x3f803f80
v_and_b32 v{tmp}, 1, v{vL}
v_cndmask_b32 v{vA}, 0, v{vI}, vcc
v_cndmask_b32 v{vA+1}, 0, v{vI}, vcc
v_cndmask_b32 v{vA+2}, v{vI}, 0, vcc
v_cndmask_b32 v{vA+3}, v{vI}, 0, vcc
v_mul_u32_u24 v{vI}, 0xaaaa, v{tmp}
v_add_u32 v{vI}, 0x4444, v{vI}""")
def spsum(d, vA, B, vI): return f"v_smfmac_f32_16x16x64_bf16 {vr(d,4)}, {vr(vA,4)}, {vr(B,8)}, v{vI}"

def flag_store(a, vtmp, vtmp2, soff):
    a(f"""v_mov_b32 v{vtmp}, 1
v_mov_b32 v{vtmp2}, 0
s_mov_b64 exec, 1
buffer_store_dword v{vtmp}, v{vtmp2}, {WSR}, s{soff} offen sc1
s_mov_b64 exec, -1""")

STG = 28672
NST = 3
W1L = [86016 + 12288 * i for i in range(5)] + [20480 + 12288 * i for i in range(3)]
SCR = 147456
AFM, VSM, LCN, LFR = SCR, 57344, SCR + 3072, SCR + 3088
QST = 19 * 8192
sCB = 60
def phase1(a, cfg, Lp2h, Lp2c, poll_and_stage):
    Lc = a.label("p1c")
    a(f"""s_and_b32 s{T}, s{sWG}, 3
s_lshl_b32 s{T}, s{T}, 2
s_bfe_u32 s{T+1}, s{sWG}, 0x20003
s_add_u32 s{sRB}, s{T}, s{T+1}
s_lshr_b32 s{T+1}, s{sWG}, 5
s_and_b32 s{T}, s{sWG}, 4
s_lshl_b32 s{T}, s{T}, 1
s_add_u32 s{sCB}, s{T}, s{T+1}
s_and_b32 s{sHW}, s{sWAVE}, 3
s_cmp_lt_u32 s{sWAVE}, 4
s_cbranch_scc1 {Lc}""")
    R = Regs(16)
    t0, t1, t2, t3 = R.alloc(), R.alloc(), R.alloc(), R.alloc()
    vXg = [R.alloc(), R.alloc()]
    vWg = [R.alloc() for _ in range(3)]; vW1g = [R.alloc() for _ in range(3)]
    vWa = R.alloc(); vB1 = R.alloc(); vRdy = R.alloc(); vAw = R.alloc(); vZ = R.alloc()
    vSI = R.alloc(); vSA = R.alloc(4, 4)
    vCs = [R.alloc(4, 4)]
    FW = R.alloc(32, 4); AF = R.alloc(4, 4)
    sXoff, sWoff, sM0x, sM0w, sCh, sCnt, sDlt, sStage, sCh0, sW1 = T + 8, T + 9, T + 10, T + 11, T + 12, T + 13, T + 14, T + 15, T + 16, sWO
    a(f"""s_lshl_b32 s{T}, s{sRB}, 1
s_add_u32 s{sCh}, s{T}, s{T+1}
s_and_b32 s{sCh}, s{sCh}, {cfg.rot}
v_lshrrev_b32 v{t0}, 3, v{vL}
v_lshrrev_b32 v{t1}, 4, v{vL}
v_and_b32 v{t2}, 7, v{vL}
v_xor_b32 v{t2}, v{t2}, v{t1}
v_lshlrev_b32 v{t2}, 4, v{t2}
v_lshl_add_u32 v{vXg[0]}, v{t0}, 10, v{t2}
v_xor_b32 v{vXg[1]}, 64, v{vXg[0]}
v_add_u32 v{vXg[1]}, 0x2000, v{vXg[1]}
s_lshl_b32 s{sXoff}, s{sRB}, 17
s_lshl_b32 s{T}, s{sHW}, 15
s_add_u32 s{sXoff}, s{sXoff}, s{T}
s_lshl_b32 s{sM0x}, s{sHW}, 12
s_mov_b32 s{sCh0}, s{sCh}""")
    for i in range(3):
        a(f"""v_add_u32 v{t0}, {64*i}, v{vL}
v_mul_u32_u24 v{t1}, 0x556, v{t0}
v_lshrrev_b32 v{t1}, 14, v{t1}
v_mul_u32_u24 v{t2}, {3072 - 192}, v{t1}
v_lshl_add_u32 v{vWg[i]}, v{t0}, 4, v{t2}
v_mul_u32_u24 v{t2}, {2752 - 192}, v{t1}
v_lshl_add_u32 v{vW1g[i]}, v{t0}, 4, v{t2}""")
    a(f"""s_mul_i32 s{sWoff}, s{sCB}, 192
s_mul_i32 s{T}, s{sHW}, {16*3072}
s_add_u32 s{sWoff}, s{sWoff}, s{T}
s_mul_i32 s{sM0w}, s{sHW}, 3072
s_mov_b32 s{sX+2}, {2048*1024}
s_mov_b32 s{sX+3}, 0x20000
s_mov_b32 s{sW+2}, {512*3072}
s_mov_b32 s{sW+3}, 0x20000
s_mov_b32 s{sStage}, 0
s_mov_b32 s{sCnt}, 0
s_waitcnt lgkmcnt(0)
s_mov_b32 s{sX}, s{sARG}
s_mov_b32 s{sX+1}, s{sARG+1}
s_mov_b32 s{sW}, s{sARG+2}
s_mov_b32 s{sW+1}, s{sARG+3}""")
    stamp(a, cfg, 'karg')
    def dma_groups():
        g = []
        X = f"s[{sX}:{sX+3}]"; W = f"s[{sW}:{sW+3}]"
        g.append(f"s_lshl_b32 s{T}, s{sCh}, 7\ns_add_u32 s{T}, s{T}, s{sXoff}\ns_add_u32 m0, s{sM0x}, s{sStage}\ns_mul_i32 s{T+1}, s{sCh}, {64*3072}\nbuffer_load_dwordx4 v{vXg[0]}, {X}, s{T} offen lds")
        g.append(f"s_add_u32 m0, m0, 1024\ns_add_u32 s{T+1}, s{T+1}, s{sWoff}\nbuffer_load_dwordx4 v{vXg[1]}, {X}, s{T} offen lds")
        g.append(f"s_add_u32 m0, m0, 1024\ns_add_u32 s{T}, s{T}, 0x4000\nbuffer_load_dwordx4 v{vXg[0]}, {X}, s{T} offen lds")
        g.append(f"s_add_u32 m0, m0, 1024\ns_add_u32 s{T+2}, s{sM0w}, s{sStage}\nbuffer_load_dwordx4 v{vXg[1]}, {X}, s{T} offen lds")
        g.append(f"s_add_u32 m0, s{T+2}, 16384\ns_add_u32 s{sCh}, s{sCh}, 1\nbuffer_load_dwordx4 v{vWg[0]}, {W}, s{T+1} offen lds")
        g.append(f"s_add_u32 m0, m0, 1024\ns_and_b32 s{sCh}, s{sCh}, 7\nbuffer_load_dwordx4 v{vWg[1]}, {W}, s{T+1} offen lds")
        g.append(f"s_add_u32 m0, m0, 1024\ns_nop 0\nbuffer_load_dwordx4 v{vWg[2]}, {W}, s{T+1} offen lds")
        return g
    def w1dma(i):
        W = f"s[{sW1}:{sW1+3}]"
        a(f"""s_add_u32 s{T}, s{sCh0}, {i}
s_and_b32 s{T}, s{T}, 7
s_mul_i32 s{T}, s{T}, {64*2752}
s_add_u32 m0, s{sM0w}, {W1L[i]}
s_add_u32 s{T}, s{T}, s{sWoff}
buffer_load_dwordx4 v{vW1g[0]}, {W}, s{T} offen lds
s_add_u32 m0, m0, 1024
s_nop 0
buffer_load_dwordx4 v{vW1g[1]}, {W}, s{T} offen lds
s_add_u32 m0, m0, 1024
s_nop 0
buffer_load_dwordx4 v{vW1g[2]}, {W}, s{T} offen lds""")
    for g in dma_groups(): a(g)
    stamp(a, cfg, 'dma0')
    srd(a, sB1, sARG + 10, 2752)
    a(f"""s_min_u32 s{T+2}, s{sHW}, 2
s_lshl_b32 s{T+2}, s{T+2}, 6
s_mul_i32 s{T}, s{sCB}, 192
s_add_u32 s{T}, s{T}, s{T+2}
v_and_b32 v{t0}, 31, v{vL}
v_lshlrev_b32 v{t1}, 1, v{t0}
buffer_load_ushort v{vB1}, v{t1}, s[{sB1}:{sB1+3}], s{T} offen
s_lshl_b32 s{T}, s{T+2}, 3
s_add_u32 s{T}, s{T}, {AFM}
v_lshl_add_u32 v{vAw}, v{t0}, 4, s{T}
v_lshrrev_b32 v{t0}, 5, v{vL}
v_bfe_u32 v{t1}, v{vL}, 2, 2
v_lshl_add_u32 v{t0}, v{t0}, 2, v{t1}
v_mul_u32_u24 v{t0}, 192, v{t0}
v_bfe_u32 v{t1}, v{vL}, 4, 1
v_lshl_add_u32 v{t0}, v{t1}, 5, v{t0}
v_and_b32 v{t1}, 3, v{vL}
v_lshl_add_u32 v{t0}, v{t1}, 3, v{t0}
s_add_u32 s{T+2}, s{T+2}, 16384
v_add_u32 v{vWa}, s{T+2}, v{t0}
v_mov_b32 v{vZ}, 0""")
    sp_ones(a, vSA, vSI, t0)
    for r in [c+i for c in vCs for i in range(4)]: a(f"v_mov_b32 v{r}, 0")
    srd(a, sWS, sARG + 20, WS_SIZE)
    srd(a, sDBG, sARG + 18, 256)
    srd(a, sW1, sARG + 8, 512 * 2752)
    a(f"s_mov_b32 s{sStage}, {STG}\nv_mov_b32 v{t3}, {LCN}\nds_write_b32 v{t3}, v{vZ}\nds_write_b32 v{t3}, v{vZ} offset:4")
    if cfg.hprio: a(f"s_setprio {cfg.hprio}")
    for g in dma_groups(): a(g)
    stamp(a, cfg, 'dma1')
    a(f"s_mov_b32 s{sStage}, {2*STG}")
    def rds(off=0, b=0): return [f"ds_read_b64_tr_b16 {vr(FW + 16*b + 2*q,2)}, v{vWa} offset:{off + q*1536}" for q in range(8)]
    def m4b(b): return [spsum(vCs[0], vSA, FW + 16*b + 8*q, vSI) for q in range(2)]
    m4s = [] if cfg.nocs else m4b(0)
    def af_out(off, bias):
        a(f"""v_and_b32 v{t1}, 16, v{vL}
v_cmp_eq_u32 vcc, 0, v{t1}
v_mov_b32 v{AF+2}, {'v%d' % vB1 if bias else 0}
v_mov_b32 v{AF+3}, 0
s_nop 3
v_add_f32 v{vCs[0]}, v{vCs[0]}, v{vCs[0]+1}
v_add_f32 v{vCs[0]+2}, v{vCs[0]+2}, v{vCs[0]+3}
v_cndmask_b32 v{vCs[0]}, v{vCs[0]+2}, v{vCs[0]}, vcc
v_cvt_pk_bf16_f32 v{AF}, v{vCs[0]}, v{vCs[0]}
v_and_b32 v{t1}, 0xffff0000, v{AF}
v_sub_f32 v{t1}, v{vCs[0]}, v{t1}
v_cvt_pk_bf16_f32 v{t1}, v{t1}, 0
v_lshl_or_b32 v{AF+1}, v{AF+2}, 16, v{t1}
ds_write_b128 v{vAw}, {vr(AF,4)} offset:{off}""")
    Lp = a.label("hloop"); Lw2 = a.label("hw"); Lnd = a.label("hnd"); Lnx = a.label("hnx")
    a(f"""s_waitcnt vmcnt(8)
s_branch {Lw2}_b
.p2align 3
{Lp}:""")
    cstamp(a, cfg, 'hA', sCnt, 4); cstamp(a, cfg, 'hG', sCnt, 5)
    a(f"""s_cmp_lt_u32 s{sCnt}, 7
s_cbranch_scc1 {Lw2}
s_waitcnt vmcnt(10)
s_branch {Lw2}_b
{Lw2}:
s_waitcnt vmcnt(7)
{Lw2}_b:""")
    cstamp(a, cfg, 'hB', sCnt, 4)
    a("s_barrier")
    cstamp(a, cfg, 'hC', sCnt, 4)
    a(f"""s_cmp_lt_u32 s{sCnt}, 6
s_cbranch_scc0 {Lnd}
{Lnd}_go:""")
    cstamp(a, cfg, 'hD', sCnt, 4)
    rr = [] if cfg.nocs else rds()
    for i, g in enumerate(dma_groups()):
        a(g)
        if i < 4:
            for l in rr[2*i:2*i+2]: a(l)
    cstamp(a, cfg, 'hE', sCnt, 4)
    a(f"s_branch {Lnx}\n{Lnd}:")
    for l in rr: a(l)
    a(f"s_cmp_eq_u32 s{sCnt}, 6\ns_cbranch_scc0 {Lnd}_7")
    a(f"""buffer_load_dword v{vRdy}, v{vZ}, s[{sDBG}:{sDBG+3}], 0 offen sc1
s_mul_i32 s{sWoff}, s{sCB}, 192
s_mul_i32 s{T}, s{sHW}, {16*2752}
s_add_u32 s{sWoff}, s{sWoff}, s{T}""")
    for i in range(3): w1dma(i)
    a(f"s_branch {Lnx}\n{Lnd}_7:")
    if cfg.w1mode == 0:
        for i in range(3, 5): w1dma(i)
    a(f"""{Lnx}:
s_add_u32 s{sCnt}, s{sCnt}, 1
s_add_u32 s{sStage}, s{sStage}, {STG}
s_cmp_eq_u32 s{sStage}, {NST*STG}
s_cselect_b32 s{sStage}, 0, s{sStage}
s_mov_b32 s{sDlt}, {STG}
s_cmp_eq_u32 s{sStage}, {(NST-1)*STG}
s_cmov_b32 s{sDlt}, {(-(NST-1)*STG) & 0xffffffff:#x}
s_waitcnt lgkmcnt(0)""")
    for l in m4s: a(l)
    a(f"v_add_u32 v{vWa}, s{sDlt}, v{vWa}\ns_cmp_lt_u32 s{sCnt}, 8\ns_cbranch_scc1 {Lp}")
    af_out(0, False)
    Lr = a.label("rdy")
    a(f"""s_waitcnt vmcnt({9 if cfg.w1mode == 0 else 3})
{Lr}:
v_readfirstlane_b32 s{T}, v{vRdy}
s_cmp_lg_u32 s{T}, 0
s_cbranch_scc1 {Lr}_ok
s_sleep 1
buffer_load_dword v{vRdy}, v{vZ}, s[{sDBG}:{sDBG+3}], 0 offen sc1
s_waitcnt vmcnt(0)
s_branch {Lr}
{Lr}_ok:
s_waitcnt lgkmcnt(0)
s_barrier""")
    stamp(a, cfg, 'A_end')
    a(f"v_add_u32 v{vWa}, {(W1L[0] - 16384 - 2*STG) & 0xffffffff:#x}, v{vWa}")
    for r in [c+i for c in vCs for i in range(4)]: a(f"v_mov_b32 v{r}, 0")
    def cs(idx, basev):
        L = a.label("cs")
        a(f"s_cmp_eq_u32 s{sWAVE}, 7\ns_cbranch_scc1 {L}")
        for l in rds(W1L[idx[0]] - basev, 0)[:7]: a(l)
        for n, i in enumerate(idx):
            a(rds(W1L[i] - basev, n & 1)[7])
            if n + 1 < len(idx):
                for l in rds(W1L[idx[n+1]] - basev, (n + 1) & 1)[:7]: a(l)
                a("s_waitcnt lgkmcnt(7)")
            else: a("s_waitcnt lgkmcnt(0)")
            for l in m4b(n & 1): a(l)
        a(f"{L}:")
    cs([0, 1], W1L[0])
    if cfg.w1mode == 0:
        for i in range(5, 8): w1dma(i)
        a("s_waitcnt vmcnt(9)"); stamp(a, cfg, 'preB8'); a("s_barrier"); stamp(a, cfg, 'postB8')
        cs([2, 3, 4], W1L[0])
    else:
        for i in range(3, 5): w1dma(i)
        a("s_waitcnt vmcnt(6)\ns_barrier")
        for i in range(5, 8): w1dma(i)
        cs([2], W1L[0])
        a("s_waitcnt vmcnt(9)\ns_barrier")
        cs([3, 4], W1L[0])
    a(f"v_add_u32 v{vWa}, {(W1L[5] - W1L[0]) & 0xffffffff:#x}, v{vWa}")
    poll_and_stage("ids")
    a("s_waitcnt vmcnt(0)"); stamp(a, cfg, 'preB20'); a("s_barrier"); stamp(a, cfg, 'postB20')
    L7 = a.label("h7")
    a(f"s_cmp_eq_u32 s{sWAVE}, 7\ns_cbranch_scc1 {L7}")
    cs([5, 6, 7], W1L[5])
    af_out(1536, True)
    a(f"""v_mov_b32 v{t0}, 1
s_waitcnt lgkmcnt(0)
s_mov_b64 exec, 1
ds_add_u32 v{t3}, v{t0}
s_mov_b64 exec, -1
{L7}:""")
    stamp(a, cfg, 'B_end')
    a(f"s_branch {Lp2h}")
    hi1 = R.hi
    a(f"{Lc}:")
    R = Regs(2)
    t0, t1, t2, t3 = R.alloc(), R.alloc(), R.alloc(), R.alloc()
    assert t2 % 2 == 0
    vXa = [R.alloc() for _ in range(4)]
    vWa = R.alloc(); vL16 = R.alloc(); vVw = R.alloc(); vVr = R.alloc(); vAa = R.alloc(); vDum = R.alloc(); vVw2 = R.alloc(); vSI = R.alloc()
    vRS = R.alloc(2, 2); vK = R.alloc(2, 2); vSA = R.alloc(4, 4)
    vSt = R.alloc(4, 4); vSq = R.alloc(4, 4); vBF = R.alloc(4, 4); vSq2 = R.alloc(4, 4); vSq3 = vBF
    FB = R.alloc(36, 4)
    FWc = lambda b, p: FB + 12 * b + 4 * p
    ACC = [R.alloc(16, 4) for _ in range(3)]
    X = R.alloc(128, 4)
    if cfg.codepf:
        a(f"""s_getpc_b64 s[{T}:{T+1}]
s_and_b32 s{T}, s{T}, 0xffffff00
v_lshlrev_b32 v{t0}, 7, v0
global_load_dword v{vDum}, v{t0}, s[{T}:{T+1}]""")
    a(f"v_lshlrev_b32 v{vL16}, 4, v{vL}\ns_waitcnt lgkmcnt(0)")
    srd(a, sWS, sARG + 20, WS_SIZE)
    Lncl = a.label("nclr")
    a(f"""s_or_b32 s{T}, s{sWG}, s{sWAVE}
s_cmp_eq_u32 s{T}, 0
s_cbranch_scc0 {Lncl}""")
    srd(a, sDBG, sARG + 18, 256)
    for r in range(4): a(f"v_mov_b32 v{FB+4+r}, 0")
    a(f"s_mov_b32 s{T}, {WS_FL}")
    for i in range(FL_BYTES // 1024):
        if i % 4 == 0 and i: a(f"s_add_u32 s{T}, s{T}, 4096")
        a(f"buffer_store_dwordx4 {vr(FB+4,4)}, v{vL16}, {WSR}, s{T} offen offset:{(i%4)*1024} sc1")
    a(f"""v_mov_b32 v{t0}, 1
s_waitcnt vmcnt(0)
s_mov_b64 exec, 1
buffer_store_dword v{t0}, v{FB+4}, s[{sDBG}:{sDBG+3}], 0 offen sc1
s_mov_b64 exec, -1
{Lncl}:
v_and_b32 v{t0}, 31, v{vL}
v_lshrrev_b32 v{t1}, 5, v{vL}
v_bfe_u32 v{t2}, v{vL}, 1, 3
v_xor_b32 v{t2}, v{t2}, v{t1}
v_lshlrev_b32 v{t2}, 4, v{t2}
v_lshl_add_u32 v{t2}, v{t0}, 7, v{t2}
s_lshl_b32 s{T}, s{sWAVE}, 12
v_add_u32 v{vXa[0]}, s{T}, v{t2}""")
    for j in range(1, 4): a(f"v_xor_b32 v{vXa[j]}, {32*j}, v{vXa[0]}")
    a(f"""v_lshlrev_b32 v{vAa}, 4, v{t0}
v_add_u32 v{vAa}, {AFM}, v{vAa}
v_lshlrev_b32 v{t0}, 5, v{t0}
v_lshl_add_u32 v{t0}, v{t1}, 3, v{t0}
s_mul_i32 s{T}, s{sWAVE}, 6144
s_add_u32 s{T}, s{T}, {VSM}
v_add_u32 v{vVw}, s{T}, v{t0}
v_lshrrev_b32 v{t0}, 4, v{vL}
v_bfe_u32 v{t2}, v{vL}, 2, 2
v_lshl_add_u32 v{t0}, v{t0}, 3, v{t2}
v_and_b32 v{t3}, 3, v{vL}
v_lshlrev_b32 v{t3}, 3, v{t3}
v_lshl_add_u32 v{t0}, v{t0}, 5, v{t3}
v_add_u32 v{vVr}, s{T}, v{t0}
v_lshl_add_u32 v{t0}, v{t1}, 3, v{t2}
v_mul_u32_u24 v{t0}, 192, v{t0}
v_bfe_u32 v{t1}, v{vL}, 4, 1
v_lshlrev_b32 v{t1}, 5, v{t1}
v_add3_u32 v{vWa}, v{t0}, v{t1}, v{t3}""")
    sp_ones(a, vSA, vSI, t0)
    for i in range(4): a(f"v_mov_b32 v{vSt+i}, 0\nv_mov_b32 v{vSq+i}, 0\nv_mov_b32 v{vSq3+i}, 0\nv_mov_b32 v{vSq2+i}, 0")
    srd(a, sWO, sARG + 8, 512 * 2752)
    a(f"""s_and_b32 s{T}, s{sRB}, 3
s_lshl_b32 s{T}, s{T}, 2
s_add_u32 s{T}, s{T}, s{sWAVE}
s_mul_i32 s{T}, s{T}, {32*2752}
s_mul_i32 s{T+1}, s{sCB}, 192
s_add_u32 s{T}, s{T}, s{T+1}
v_lshrrev_b32 v{t0}, 1, v{vL}
v_mul_u32_u24 v{t0}, 2752, v{t0}
v_and_b32 v{t1}, 1, v{vL}
v_mul_u32_u24 v{t1}, 188, v{t1}
v_add3_u32 v{vVw2}, v{t0}, v{t1}, s{T}""")
    sTT, sQA, sQF, sHA, sHF, sP0 = T + 6, T + 8, T + 14, T + 15, T + 16, T + 7
    a(f"""s_lshl_b32 s{sTT}, s{sRB}, 2
s_add_u32 s{sTT}, s{sTT}, s{sWAVE}
s_mul_i32 s{sP0}, s{sCB}, 3""")
    for p in range(3):
        a(f"""s_add_u32 s{T+2}, s{sP0}, {p}
s_and_b32 s{T+3}, s{T+2}, 15
s_lshl_b32 s{T+3}, s{T+3}, 7
s_add_u32 s{T+3}, s{T+3}, s{sTT}
s_cmp_lt_u32 s{T+2}, 16
s_cselect_b32 s{T+4}, 10, 11
s_cselect_b32 s{T+5}, {WS_Q}, {WS_KV}
s_lshl_b32 s{T+3}, s{T+3}, s{T+4}
s_add_u32 s{T+3}, s{T+3}, s{T+5}
s_lshl_b32 s{T+4}, 64, s{T+4}
s_cmp_ge_u32 s{T+2}, 32
s_cselect_b32 s{T+5}, 1024, 0
s_add_u32 s{sQA+2*p}, s{T+3}, s{T+5}
s_add_u32 s{sQA+2*p+1}, s{sQA+2*p}, s{T+4}""")
    a(f"""s_lshl_b32 s{sQF}, s{sCB}, 6
s_add_u32 s{sQF}, s{sQF}, s{sTT}
s_lshl_b32 s{sQF}, s{sQF}, 2
s_add_u32 s{sQF}, s{sQF}, {FQ}
s_lshl_b32 s{sHF}, s{sTT}, 4
s_add_u32 s{sHF}, s{sHF}, s{sCB}
s_lshl_b32 s{sHF}, s{sHF}, 2
s_add_u32 s{sHF}, s{sHF}, {FH}
s_mul_i32 s{sHA}, s{sTT}, {NKS}
s_mul_i32 s{T}, s{sCB}, 6
s_add_u32 s{sHA}, s{sHA}, s{T}
s_add_u32 s{sHA}, s{sHA}, 32
s_lshl_b32 s{sHA}, s{sHA}, 10
s_add_u32 s{sHA}, s{sHA}, {WS_AH}""")
    wbase = [0]; xbase = [0]
    def reads(g, passA):
        c, ks = g >> 2, g & 3
        b = g % 3
        out = []
        wl = ((c % 3) * STG + 16384 if passA else W1L[c]) + ks * 3072
        if wl - wbase[0] < 0 or wl - wbase[0] + 1024 > 65535:
            nb = (c % 3) * STG if passA else W1L[c]
            out.append(f"v_add_u32 v{vWa}, {(nb - wbase[0]) & 0xffffffff:#x}, v{vWa}"); wbase[0] = nb
        if passA:
            out.append(f"ds_read_b128 {vr(X+4*g,4)}, v{vXa[ks]} offset:{(c % 3) * STG}")
        for p in range(3):
            out.append(f"ds_read_b64_tr_b16 {vr(FWc(b,p),2)}, v{vWa} offset:{wl - wbase[0] + p*64}")
            out.append(f"ds_read_b64_tr_b16 {vr(FWc(b,p)+2,2)}, v{vWa} offset:{wl - wbase[0] + p*64 + 768}")
        return out
    m4 = lambda d, A, B: f"v_mfma_f32_4x4x4_16b_bf16 {vr(d,4)}, {vr(A,2)}, {vr(B,2)}, {vr(d,4)}"
    def burst(gs):
        if cfg.nostats: return
        gs = list(gs)
        for g in gs[::2]: a(spsum(vSt, vSA, X + 4 * g, vSI))
        k = 0
        for g in gs:
            for h in (0, 2):
                x = X + 4 * g + h
                a(m4([vSq, vSq2, vSq3][k % 3], x, x)); k += 1
    def gemm(passA, bars, hooks, tail=None):
        nrd = 7 if passA else 6
        for g in (0, 1):
            for l in reads(g, passA): a(l)
        for g in range(32):
            if g in hooks: hooks[g]()
            nxt = []
            extra = 0
            if g + 2 < 32:
                if g + 2 in bars:
                    if passA:
                        burst(range(max(0, g - 4), g))
                        a("s_waitcnt lgkmcnt(0)")
                    stamp(a, cfg, f"pre{'A' if passA else 'B'}{g+2}")
                    a("s_barrier")
                    stamp(a, cfg, f"post{'A' if passA else 'B'}{g+2}")
                nxt = reads(g + 2, passA)
            a(f"s_waitcnt lgkmcnt({nrd + extra if g + 1 < 32 else 0})")
            if passA and g == 31: burst(range(26, 32))
            x = X + 4 * g
            n = len(nxt)
            for p in range(3):
                c = "0" if g == 0 else vr(ACC[p], 16)
                if cfg.m16:
                    for q in range(2):
                        qq = 4 * (2 * (g & 1) + q)
                        a(f"v_mfma_f32_16x16x32_bf16 {vr(ACC[p]+qq,4)}, {vr(FWc(g % 3,p),4)}, {vr(X + 4*(g ^ q),4)}, {'0' if g < 2 else vr(ACC[p]+qq,4)}")
                else: a(f"v_mfma_f32_32x32x16_bf16 {vr(ACC[p],16)}, {vr(FWc(g % 3,p),4)}, {vr(x,4)}, {c}")
                for l in nxt[p*n//3:(p+1)*n//3]: a(l)

    stamp(a, cfg, 'karg')
    a("s_waitcnt lgkmcnt(0)\ns_barrier")
    stamp(a, cfg, 'bar0')
    def w1warm():
        a(f"buffer_load_dword v{vDum}, v{vVw2}, s[{sWO}:{sWO+3}], 0 offen")
    gemm(True, {4 * c for c in range(1, 8)}, {cfg.w1pf: w1warm} if cfg.w1pf else {})
    vM, vQ2, vSd, vRs = vSq, vSq+1, vRS+1, vRS
    BF = vBF
    a(f"""v_and_b32 v{t0}, 3, v{vL}
v_cmp_eq_u32 vcc, 1, v{t0}
v_cmp_eq_u32 s[{T}:{T+1}], 2, v{t0}
v_cmp_eq_u32 s[{T+2}:{T+3}], 3, v{t0}
v_add_f32 v{vSq}, v{vSq}, v{vSq2}
v_add_f32 v{vSq+1}, v{vSq+1}, v{vSq2+1}
v_add_f32 v{vSq+2}, v{vSq+2}, v{vSq2+2}
v_add_f32 v{vSq+3}, v{vSq+3}, v{vSq2+3}
v_add_f32 v{vSq}, v{vSq}, v{vSq3}
v_add_f32 v{vSq+1}, v{vSq+1}, v{vSq3+1}
v_add_f32 v{vSq+2}, v{vSq+2}, v{vSq3+2}
v_add_f32 v{vSq+3}, v{vSq+3}, v{vSq3+3}
v_cndmask_b32 v{vSq2}, v{vSq}, v{vSq+1}, vcc
v_cndmask_b32 v{vSq2}, v{vSq2}, v{vSq+2}, s[{T}:{T+1}]
v_cndmask_b32 v{vSq2}, v{vSq2}, v{vSq+3}, s[{T+2}:{T+3}]
v_and_b32 v{t1}, 16, v{vL}
v_cmp_eq_u32 s[{T}:{T+1}], 0, v{t1}
v_mov_b32 v{vSq2+1}, v{vSq2}
v_cmp_gt_u32 vcc, 32, v{vL}
v_mov_b32 v{BF+3}, 0
v_add_f32 v{vSt}, v{vSt}, v{vSt+1}
v_add_f32 v{vSt+2}, v{vSt+2}, v{vSt+3}
v_permlane32_swap_b32 v{vSq2}, v{vSq2+1}
v_cndmask_b32 v{vM}, v{vSt+2}, v{vSt}, s[{T}:{T+1}]
v_add_f32 v{vQ2}, v{vSq2}, v{vSq2+1}
v_mul_f32 v{vM}, {f2u(-1.0/512):#x}, v{vM}
v_mul_f32 v{vQ2}, {f2u(1.0/512):#x}, v{vQ2}
v_fma_f32 v{vQ2}, -v{vM}, v{vM}, v{vQ2}
v_max_f32 v{vQ2}, 0, v{vQ2}
v_add_f32 v{vQ2}, {f2u(1e-5):#x}, v{vQ2}
v_rsq_f32 v{vRs}, v{vQ2}
v_cndmask_b32 v{vM}, 0, v{vM}, vcc
v_mul_f32 v{vSd}, v{vQ2}, v{vRs}
v_cvt_pk_bf16_f32 v{t0}, v{vM}, v{vM}
v_cndmask_b32 v{vQ2}, 0, v{vSd}, vcc
v_and_b32 v{t1}, 0xffff0000, v{t0}
v_sub_f32 v{t1}, v{vM}, v{t1}
v_cvt_pk_bf16_f32 v{BF}, v{vM}, v{t1}
v_cvt_pk_bf16_f32 v{BF+1}, v{vM}, v{vQ2}
v_and_b32 v{t1}, 0xffff0000, v{BF+1}
v_sub_f32 v{t1}, v{vQ2}, v{t1}
v_cvt_pk_bf16_f32 v{BF+2}, v{t1}, 0
v_mul_f32 v{vK}, {f2u(0.25*LOG2E):#x}, v{vRs}
s_barrier""")
    stamp(a, cfg, 'A_end')
    def rank1(off):
        for p in range(3): a(f"ds_read_b128 {vr(FB+4*p,4)}, v{vAa} offset:{off + 512*p}")
        for p in range(3):
            a(f"s_waitcnt lgkmcnt({2-p})")
            a(f"v_mfma_f32_32x32x16_bf16 {vr(ACC[p],16)}, {vr(FB+4*p,4)}, {vr(BF,4)}, {vr(ACC[p],16)}")
    rank1(0)
    a("s_nop 7")
    OB = FB + 12
    Lv = a.label("p1v"); Lq = a.label("p1q")
    a(f"s_cmp_ge_u32 s{sP0}, 32\ns_cbranch_scc1 {Lv}")
    def vwrite(o, off):
        a(f"""ds_write_b64 v{vVw}, {vr(o,2)} offset:{off}
ds_write_b64 v{vVw}, {vr(o+2,2)} offset:{off+16}
ds_write_b64 v{vVw}, {vr(o+4,2)} offset:{off+1024}
ds_write_b64 v{vVw}, {vr(o+6,2)} offset:{off+1040}""")
    def vread(o, off):
        a(f"""ds_read_b64_tr_b16 {vr(o,2)}, v{vVr} offset:{off}
ds_read_b64_tr_b16 {vr(o+2,2)}, v{vVr} offset:{off+128}
ds_read_b64_tr_b16 {vr(o+4,2)}, v{vVr} offset:{off+1024}
ds_read_b64_tr_b16 {vr(o+6,2)}, v{vVr} offset:{off+1152}""")
    def vstore(o, p):
        a(f"""buffer_store_dwordx4 {vr(o,4)}, v{vL16}, {WSR}, s{sQA+2*p} offen sc1
buffer_store_dwordx4 {vr(o+4,4)}, v{vL16}, {WSR}, s{sQA+2*p+1} offen sc1""")
    for p in range(3):
        ac = ACC[p]; o = OB + 8 * p
        a(f"""s_cmp_lt_u32 s{sP0}, {16 - p}
s_cselect_b64 vcc, -1, 0
v_cndmask_b32 v{t2}, v{vRs}, v{vK}, vcc""")
        if cfg.qpk:
            for r in range(0, 16, 2): a(f"v_pk_mul_f32 {P(ac+r)}, {P(ac+r)}, {P(t2)} op_sel_hi:[1,0]")
        else:
            for r in range(16): a(f"v_mul_f32 v{ac+r}, v{ac+r}, v{t2}")
        for r in range(8): a(f"v_cvt_pk_bf16_f32 v{o+r}, v{ac+2*r}, v{ac+2*r+1}")
        if p == 2:
            Lk = a.label("p1k")
            a(f"s_cmp_lt_u32 s{sP0}, 30\ns_cbranch_scc1 {Lk}")
            vwrite(o, 0); a("s_waitcnt lgkmcnt(0)"); vread(o, 0); a("s_waitcnt lgkmcnt(0)")
            a(f"{Lk}:")
        vstore(o, p)
    a(f"s_branch {Lq}\n{Lv}:")
    for p in range(3):
        ac = ACC[p]; o = OB + 8 * p
        for r in range(16): a(f"v_mul_f32 v{ac+r}, v{ac+r}, v{vRS}")
        for r in range(8): a(f"v_cvt_pk_bf16_f32 v{o+r}, v{ac+2*r}, v{ac+2*r+1}")
        if p:
            a("s_waitcnt lgkmcnt(0)"); vread(OB + 8*(p-1), 2048*(p-1))
        vwrite(o, 2048 * p)
    a("s_waitcnt lgkmcnt(4)"); vstore(OB, 0); vstore(OB + 8, 1)
    a("s_waitcnt lgkmcnt(0)"); vread(OB + 16, 4096); a("s_waitcnt lgkmcnt(0)"); vstore(OB + 16, 2)
    a(f"{Lq}:")
    stamp(a, cfg, 'qst')
    def pub():
        a("s_waitcnt vmcnt(0)")
        stamp(a, cfg, 'qdone')
        flag_store(a, t0, t1, sQF)
    gemm(False, {8, 20} if cfg.w1mode == 0 else {8, 12, 20}, {cfg.pubg: pub})
    stamp(a, cfg, 'preBend')
    Lh = a.label("afw")
    a(f"""v_mov_b32 v{t0}, {LCN}
{Lh}:
ds_read_b32 v{t1}, v{t0}""")
    for p in range(3): a(f"ds_read_b128 {vr(FB+4*p,4)}, v{vAa} offset:{1536 + 512*p}")
    a(f"""s_waitcnt lgkmcnt(0)
v_readfirstlane_b32 s{T}, v{t1}
s_cmp_eq_u32 s{T}, 3
s_cbranch_scc0 {Lh}""")
    stamp(a, cfg, 'B_end')
    for p in range(3): a(f"v_mfma_f32_32x32x16_bf16 {vr(ACC[p],16)}, {vr(FB+4*p,4)}, {vr(BF,4)}, {vr(ACC[p],16)}")
    C1 = -2.0 * 0.7978845608028654 * LOG2E
    a(f"""v_mul_f32 v{vK}, {f2u(C1):#x}, v{vRs}
v_mul_f32 v{t0}, v{vRs}, v{vRs}
v_mul_f32 v{vK+1}, {f2u(0.044715):#x}, v{vK}
v_mul_f32 v{vK+1}, v{vK+1}, v{t0}
s_mov_b32 s{sHFL}, s{sHF}
s_nop 5""")
    for p in range(3):
        a(f"s_cmp_ge_u32 s{sP0}, {43 - p}\ns_cbranch_scc1 {Lp2c}")
        ac = ACC[p]; w = FB + 12; kc = P(vK); rs = P(vRS)
        for r in range(0, 16, 2): a(f"v_pk_mul_f32 {P(w+r)}, {P(ac+r)}, {P(ac+r)}")
        for r in range(0, 16, 2): a(f"v_pk_fma_f32 {P(w+r)}, {P(w+r)}, {kc}, {kc} op_sel:[0,1,0] op_sel_hi:[1,1,0]")
        for r in range(0, 16, 2): a(f"v_pk_mul_f32 {P(w+r)}, {P(w+r)}, {P(ac+r)}")
        for r in range(16): a(f"v_exp_f32 v{w+r}, v{w+r}")
        for r in range(0, 16, 2): a(f"v_pk_fma_f32 {P(w+r)}, {P(w+r)}, {rs}, {rs} op_sel:[0,1,1] op_sel_hi:[1,1,1]")
        for r in range(16): a(f"v_rcp_f32 v{w+r}, v{w+r}")
        for r in range(0, 16, 2): a(f"v_pk_mul_f32 {P(ac+r)}, {P(ac+r)}, {P(w+r)}")
        for r in range(8): a(f"v_cvt_pk_bf16_f32 v{ac+r}, v{ac+2*r}, v{ac+2*r+1}")
        if p == 2: a(f"s_add_u32 s{sHA}, s{sHA}, 4096")
        off = 2048 * p if p < 2 else 0
        a(f"buffer_store_dwordx4 {vr(ac,4)}, v{vL16}, {WSR}, s{sHA} offen offset:{off} sc1")
        a(f"buffer_store_dwordx4 {vr(ac+4,4)}, v{vL16}, {WSR}, s{sHA} offen offset:{off+1024} sc1")
    a(f"s_branch {Lp2c}")
    return max(R.hi, hi1)

CMB = 17 * 8192
class PollStage:
    def __init__(self, a, cfg): self.a = a; self.cfg = cfg
    def loads(self):
        a = self.a
        a(f"""buffer_load_dword v10, v8, {WSR}, s{T+17} offen sc1
buffer_load_dword v11, v8, {WSR}, s{T+18} offen sc1
buffer_load_dword v12, v9, {WSR}, s{T+19} offen sc1""")
    def check(self):
        self.a(f"""s_waitcnt vmcnt(0)
v_and_b32 v10, v10, v11
v_and_b32 v10, v10, v12
v_cmp_eq_u32 vcc, 1, v10
s_cmp_eq_u64 vcc, exec""")
    def stage(self):
        a = self.a
        a(f"""s_lshl_b32 s{T}, s{sHEAD}, 6
s_lshl_b32 s{T+1}, s{sQB}, 3
s_add_u32 s{T}, s{T}, s{T+1}
s_lshl_b32 s{T+1}, s{sQP}, 1
s_add_u32 s{T}, s{T}, s{T+1}
s_lshl_b32 s{T}, s{T}, 10
s_lshl_b32 s{T+1}, s{sQP}, 11
s_add_u32 m0, s{T+1}, {QST}
s_lshl_b32 s{T+2}, s{sQP}, 10
buffer_load_dwordx4 v6, {WSR}, s{T} offen sc1 lds
buffer_load_dwordx4 v6, {WSR}, s{T} offen offset:1024 sc1 lds
s_lshl_b32 s{T+3}, s{sHEAD}, 17
s_add_u32 s{T+3}, s{T+3}, s{T+2}
s_add_u32 s{T+3}, s{T+3}, {WS_KV}""")
        for i in range(5):
            for h in range(2):
                a(f"s_add_u32 m0, s{T+2}, {h*65536 + i*4096}\ns_add_u32 s{T}, s{T+3}, {h*65536 + i*4096}")
                a(f"buffer_load_dwordx4 v6, {WSR}, s{T} offen sc1 lds")
    def emit(self, what):
        a = self.a
        if what == "ids":
            a(f"""s_and_b32 s{T}, s{sWG}, 7
s_lshl_b32 s{T}, s{T}, 2
s_bfe_u32 s{T+1}, s{sWG}, 0x20003
s_add_u32 s{sHEAD}, s{T}, s{T+1}
s_lshr_b32 s{sQB}, s{sWG}, 5
s_and_b32 s{sQP}, s{sWAVE}, 3
s_lshr_b32 s{sKH}, s{sWAVE}, 2
v_lshlrev_b32 v6, 4, v{vL}
v_lshlrev_b32 v8, 2, v{vL}
v_and_b32 v9, 28, v8""")
            for ty, dst in ((1, T + 17), (2, T + 18), (0, T + 19)):
                a(f"""s_lshr_b32 s{T}, s{sHEAD}, 1
s_add_u32 s{T}, s{T}, {16*ty}
s_mul_i32 s{T}, s{T}, 86
s_and_b32 s{T}, s{T}, 0xff00
s_add_u32 s{dst}, s{T}, {FQ}""")
            a(f"s_lshl_b32 s{T}, s{sQB}, 5\ns_add_u32 s{T+19}, s{T+19}, s{T}")
        else:
            L = a.label("fin")
            a(f"v_mov_b32 v7, {LCN + 4}\ns_cmp_eq_u32 s{sWAVE}, 7\ns_cbranch_scc0 {L}_l\n{L}:")
            self.loads(); self.check()
            a(f"""s_cbranch_scc1 {L}_ok
s_sleep {self.cfg.qsl}
s_branch {L}
{L}_ok:
ds_write_b32 v7, v10
s_branch {L}_go
{L}_l:
ds_read_b32 v10, v7
s_waitcnt lgkmcnt(0)
v_readfirstlane_b32 s{T}, v10
s_cmp_eq_u32 s{T}, 0
s_cbranch_scc0 {L}_go
s_sleep 1
s_branch {L}_l
{L}_go:""")
            stamp(a, self.cfg, 'seen')
            self.stage()
            stamp(a, self.cfg, 'p2in')

def phase23(a, cfg, Lp2h, Lp2c, PS):
    R = Regs(2)
    t0, t1, t2, t3, vL16, vIdx, vAK, vAV, vW3g, vOut, vPoll, vPa = [R.alloc() for _ in range(12)]
    vWa = R.alloc(); vWa2 = R.alloc(); vRd = [R.alloc() for _ in range(4)]; vPo = R.alloc(); vDum = R.alloc()
    vXr = R.alloc(4, 4); vBr = R.alloc(4, 4); XB = R.alloc(8, 4)
    NH = 13
    HF = R.alloc(4 * NH, 4)
    FW0 = R.alloc(8, 4)
    ACC = R.alloc(32, 4)
    vQ = [R.alloc(4, 4) for _ in range(2)]
    vK = [R.alloc(4, 4) for _ in range(2)]
    vV = [R.alloc(8, 4) for _ in range(2)]
    vS = [R.alloc(16, 4) for _ in range(2)]
    vO = [R.alloc(16, 4) for _ in range(2)]
    FWb = [FW0, vQ[0], vK[0]]
    OF = vO[0]
    sEx, sKVg, sKVl = T + 10, T + 12, T + 13
    sOF, sOA, sOL, sOP, sWoA, sGot, sHP = T + 14, T + 15, T + 16, T + 17, T + 18, T + 19, T + 9
    sRT3, sCT = sHEAD, sQB
    W2R = f"s[{sW2}:{sW2+3}]"; WOR = f"s[{sWO}:{sWO+3}]"
    a(f"{Lp2h}:")
    PS.emit("finish")
    Lcom = a.label("p2com")
    a(f"s_mov_b32 s{sHFL}, 0\ns_branch {Lcom}\n{Lp2c}:")
    stamp(a, cfg, 'p2in')
    a(f"""s_and_b32 s{T}, s{sWG}, 7
s_lshl_b32 s{T}, s{T}, 2
s_bfe_u32 s{T+1}, s{sWG}, 0x20003
s_add_u32 s{sHEAD}, s{T}, s{T+1}
s_lshr_b32 s{sQB}, s{sWG}, 5
s_and_b32 s{sQP}, s{sWAVE}, 3
s_lshr_b32 s{sKH}, s{sWAVE}, 2
v_lshlrev_b32 v{vL16}, 4, v{vL}
{Lcom}:
s_lshl_b32 s{T}, s{sKH}, 16
v_and_b32 v{t0}, 27, v{vL}
v_mov_b32 v{t1}, 0x3f803f80
v_cmp_eq_u32 vcc, 16, v{t0}
v_add_u32 v{vAK}, s{T}, v{vL16}
v_lshrrev_b32 v{t2}, 5, v{vL}
v_cndmask_b32 v{t0}, 0, v{t1}, vcc
v_lshlrev_b32 v{t2}, 8, v{t2}
v_and_b32 v{t1}, 15, v{vL}
v_lshlrev_b32 v{t1}, 4, v{t1}
v_add3_u32 v{vAV}, v{t2}, v{t1}, s{T}
s_mov_b32 s{sEx}, 0x0000ffff
s_mov_b32 s{sEx+1}, 0x0000ffff
s_lshl_b32 s{T+1}, s{sQP}, 11
s_add_u32 s{T+1}, s{T+1}, {QST}
v_add_u32 v{t2}, s{T+1}, v{vL16}""")
    for r in range(8): a(f"v_mov_b32 v{vV[0]+r}, v{t0}")
    LA = a.label("barA")
    a(f"s_cmp_lt_u32 s{sWAVE}, 4\ns_cbranch_scc1 {LA}\ns_waitcnt vmcnt(0)\n{LA}:\ns_waitcnt lgkmcnt(0)\ns_barrier")
    stamp(a, cfg, 'att0')

    vmq = []
    def vm(tag, cond=False): vmq.append((tag, cond))
    def vmwait(tags):
        idx = max(i for i, (t, c) in enumerate(vmq) if t in tags)
        n = sum(1 for t, c in vmq[idx+1:] if not c)
        assert n < 64
        return f"s_waitcnt vmcnt({n})"
    slot_of = {}
    def w2dma(j, slot):
        def f():
            slot_of[j] = slot; vm(f"w{j}")
            a(f"s_add_u32 m0, s{sM3}, {slot*8192}\ns_add_u32 s{T}, s{sW3}, {j*16384}")
            a(f"buffer_load_dwordx4 v{vW3g}, {W2R}, s{T} offen lds")
        return f
    def wodma(i, slot):
        def f():
            slot_of[100 + i] = slot; vm(f"o{i}")
            a(f"s_add_u32 m0, s{sM3}, {slot*8192}\ns_add_u32 s{T}, s{sWoA}, {i*16384}")
            a(f"buffer_load_dwordx4 v{vW3g}, {WOR}, s{T} offen lds")
        return f
    def kvdma(i):
        def f():
            vm(f"kv{i}")
            a(f"s_add_u32 m0, s{sKVl}, {i*4096}\ns_add_u32 s{T}, s{sKVg}, {i*4096}")
            a(f"buffer_load_dwordx4 v{vL16}, {WSR}, s{T} offen sc1 lds")
        return f
    def hload(j):
        def f():
            L = None
            if j >= 20:
                L = a.label("hs"); a(f"s_cmp_eq_u32 s{sKQ}, 3\ns_cbranch_scc1 {L}")
            vm(f"h{j}", j >= 20)
            a(f"s_add_u32 s{T}, s{sH3}, {j*1024}")
            a(f"buffer_load_dwordx4 {vr(HF+4*(j % NH),4)}, v{vL16}, {WSR}, s{T} offen sc1")
            if L: a(f"{L}:")
        return f
    def txt(t): return lambda: a(t)
    base = [0]
    def rdW(b, slot):
        off = slot * 8192 - base[0]
        if off < 0 or off + 1024 > 65535:
            nb = (slot // 8) * 65536
            d = nb - base[0]
            a(f"v_add_u32 v{vWa}, {d & 0xffffffff:#x}, v{vWa}\nv_add_u32 v{vWa2}, {d & 0xffffffff:#x}, v{vWa2}")
            base[0] = nb; off = slot * 8192 - nb
        a(f"ds_read_b64_tr_b16 {vr(FWb[b],2)}, v{vWa} offset:{off}")
        a(f"ds_read_b64_tr_b16 {vr(FWb[b]+2,2)}, v{vWa} offset:{off+1024}")
        a(f"ds_read_b64_tr_b16 {vr(FWb[b]+4,2)}, v{vWa2} offset:{off}")
        a(f"ds_read_b64_tr_b16 {vr(FWb[b]+6,2)}, v{vWa2} offset:{off+1024}")
    first = [True, True]
    def mm1(b, frag, p):
        c = "0" if first[p] else vr(ACC+16*p, 16)
        first[p] = False
        a(f"v_mfma_f32_32x32x16_bf16 {vr(ACC+16*p,16)}, {vr(FWb[b]+4*p,4)}, {vr(frag,4)}, {c}")
    def run(steps, pre=True, vmo=False, hooks={}):
        n = len(steps)
        if pre:
            rdW(0, steps[0][0])
            if n > 1: rdW(1, steps[1][0])
        for i in range(n):
            if i in hooks: hooks[i]()
            if i + 2 < n: rdW((i + 2) % 3, steps[i + 2][0])
            a(f"s_waitcnt {f'vmcnt({n-1-i}) ' if vmo else ''}lgkmcnt({4 * min(2, n - 1 - i)})")
            mm1(i % 3, steps[i][1], 0); mm1(i % 3, steps[i][1], 1)
    def hs(js): return [(slot_of[j], HF + 4*(j % NH)) for j in js]

    ch = {}
    def put(kt, ph, f): ch.setdefault((kt, ph), []).append(f)
    def seq(kt, fs, per=1, ph=0):
        p = 2 * kt + ph
        for i, f in enumerate(fs): put((p + i // per) // 2, (p + i // per) & 1, f)
    def srdt(d, lo, size): return txt(f"s_mov_b32 s{d}, s{lo}\ns_mov_b32 s{d+1}, s{lo+1}\ns_mov_b32 s{d+2}, {size:#x}\ns_mov_b32 s{d+3}, 0x20000")
    put(0, 0, txt(f"""s_lshl_b32 s{T}, s{sKH}, 16
s_lshl_b32 s{sKVl}, s{sQP}, 10
s_add_u32 s{sKVl}, s{sKVl}, s{T}
s_lshl_b32 s{sKVg}, s{sHEAD}, 17
s_add_u32 s{sKVg}, s{sKVg}, s{sKVl}
s_add_u32 s{sKVg}, s{sKVg}, {WS_KV}"""))
    seq(0, [kvdma(i) for i in range(5, 9)], ph=1)
    seq(1, [srdt(sW2, sARG + 12, 1376 * 1024), srdt(sX, sARG, 2048 * 1024), srdt(sB2, sARG + 14, 1024), srdt(sWO, sARG + 4, 512 * 1024), srdt(sOUT, sARG + 16, 2048 * 1024)])
    put(3, 0, txt(f"""s_lshr_b32 s{sKQ}, s{sWAVE}, 1
s_and_b32 s{T+4}, s{sWAVE}, 1
s_lshl_b32 s{T+2}, s{sRT3}, 1
s_add_u32 s{T+2}, s{T+2}, s{T+4}
s_mul_i32 s{T+1}, s{sKQ}, 22
s_mul_i32 s{sH3}, s{T+2}, {NKS}
s_lshl_b32 s{sOL}, s{sKQ}, 3
s_add_u32 s{sOL}, s{sOL}, s{sH3}
s_lshl_b32 s{sOL}, s{sOL}, 10
s_add_u32 s{sOL}, s{sOL}, {WS_AH}
s_add_u32 s{sH3}, s{sH3}, s{T+1}
s_add_u32 s{sH3}, s{sH3}, 32
s_lshl_b32 s{sH3}, s{sH3}, 10
s_add_u32 s{sH3}, s{sH3}, {WS_AH}
s_lshl_b32 s{sW3}, s{T+1}, 14
s_lshl_b32 s{T+3}, s{T+4}, 13
s_lshl_b32 s{sWo3}, s{sCT}, 7
s_add_u32 s{sWo3}, s{sWo3}, s{T+3}
s_add_u32 s{sW3}, s{sW3}, s{sWo3}
s_lshl_b32 s{sM3}, s{sWAVE}, 10
s_lshl_b32 s{sWoA}, s{sKQ}, 17
s_add_u32 s{sWoA}, s{sWoA}, s{sWo3}
s_lshl_b32 s{sHP}, s{T+2}, 6
s_add_u32 s{sHP}, s{sHP}, {FH}
s_lshl_b32 s{sOP}, s{sRT3}, 8
s_lshl_b32 s{T}, s{sKQ}, 5
s_add_u32 s{sOP}, s{sOP}, {FO}
s_lshl_b32 s{T+5}, s{T+2}, 15
s_lshl_b32 s{T+4}, s{sCT}, 7
s_add_u32 s{T+4}, s{T+4}, s{T}"""))
    put(3, 1, txt(f"""v_lshrrev_b32 v{t0}, 3, v{vL}
v_and_b32 v{t1}, 7, v{vL}
v_bfe_u32 v{t3}, v{vL}, 4, 1
v_lshlrev_b32 v{t3}, 2, v{t3}
v_xor_b32 v{t1}, v{t1}, v{t3}
v_lshlrev_b32 v{t1}, 4, v{t1}
v_lshl_add_u32 v{vW3g}, v{t0}, 10, v{t1}"""))
    def hflag():
        L = a.label("hf")
        a(f"s_cmp_eq_u32 s{sHFL}, 0\ns_cbranch_scc1 {L}\ns_waitcnt vmcnt(4)")
        flag_store(a, t0, t1, sHFL); vm("hflag", True)
        a(f"{L}:")
    put(4, 0, hflag)
    put(4, 1, w2dma(0, 16))
    def xb():
        a(f"""v_and_b32 v{t0}, 31, v{vL}
v_lshrrev_b32 v{t1}, 5, v{vL}
v_lshl_add_u32 v{t1}, v{t1}, 4, s{T+4}
v_lshl_add_u32 v{vOut}, v{t0}, 10, v{t1}
v_add_u32 v{vOut}, s{T+5}, v{vOut}
buffer_load_dwordx4 {vr(vBr,4)}, v{t1}, s[{sB2}:{sB2+3}], 0 offen
buffer_load_dwordx4 {vr(vXr,4)}, v{vOut}, s[{sX}:{sX+3}], 0 offen"""); vm("b2"); vm("x")
    put(5, 0, xb)
    put(6, 0, txt(f"""v_lshrrev_b32 v{t0}, 5, v{vL}
v_bfe_u32 v{t1}, v{vL}, 2, 2
v_lshl_add_u32 v{t0}, v{t0}, 2, v{t1}
v_lshlrev_b32 v{t0}, 7, v{t0}
v_bfe_u32 v{t1}, v{vL}, 3, 1
v_bfe_u32 v{t2}, v{vL}, 4, 1
v_lshl_add_u32 v{t1}, v{t1}, 1, v{t2}"""))
    put(6, 1, txt(f"""v_xor_b32 v{t1}, s{sKQ}, v{t1}
v_and_b32 v{t2}, 3, v{vL}
v_lshlrev_b32 v{t2}, 3, v{t2}
v_lshl_add_u32 v{t1}, v{t1}, 5, v{t2}
s_lshl_b32 s{T+4}, s{sKQ}, 11
v_add3_u32 v{vWa}, v{t0}, v{t1}, s{T+4}
v_xor_b32 v{vWa2}, 64, v{vWa}
v_and_b32 v{vPa}, 15, v{vL}
v_lshlrev_b32 v{vPa}, 2, v{vPa}
v_lshlrev_b32 v{vPo}, 2, v{vL}"""))
    seq(8, [kvdma(i) for i in range(9, 13)])
    def hpoll(): vm("hp"); a(f"buffer_load_dword v{vPoll}, v{vPa}, {WSR}, s{sHP} offen sc1")
    put(cfg.hpk, 0, hpoll)
    seq(10, [w2dma(j, sl) for j, sl in zip(range(1, 5), (0, 1, 8, 9))])
    def hcheck():
        Lh = a.label("pollh")
        a(f"""{vmwait(['hp'])}
{Lh}:
v_cmp_eq_u32 vcc, 1, v{vPoll}
s_cmp_eq_u64 vcc, exec
s_cbranch_scc1 {Lh}_ok
s_sleep 2
buffer_load_dword v{vPoll}, v{vPa}, {WSR}, s{sHP} offen sc1
s_waitcnt vmcnt(0)
s_branch {Lh}
{Lh}_ok:""")
    put(cfg.hpk + 2, 0, hcheck)
    seq(cfg.hpk + 2, [hload(j) for j in range(0, 5)], ph=1)
    def xbfin(r0):
        def f():
            if r0 == 0:
                a(vmwait(['x']))
                for v in (vXr, vBr): a(f"v_permlane32_swap_b32 v{v}, v{v+2}\nv_permlane32_swap_b32 v{v+1}, v{v+3}")
            for r in (r0, r0 + 1):
                a(f"""v_lshlrev_b32 v{XB+2*r}, 16, v{vXr+r}
v_and_b32 v{XB+2*r+1}, 0xffff0000, v{vXr+r}
v_lshlrev_b32 v{t0}, 16, v{vBr+r}
v_and_b32 v{t1}, 0xffff0000, v{vBr+r}
v_add_f32 v{XB+2*r}, v{XB+2*r}, v{t0}
v_add_f32 v{XB+2*r+1}, v{XB+2*r+1}, v{t1}""")
        return f
    put(12, 0, xbfin(0)); put(13, 0, xbfin(2))
    REDB = lambda d: None
    put(14, 0, txt(f"""s_mul_i32 s{T}, s{sWAVE}, 3072
s_add_u32 s{T}, s{T}, {CMB}
v_add_u32 v{vXr}, s{T}, v{vL16}
s_xor_b32 s{T}, s{sWAVE}, 4
s_mul_i32 s{T}, s{T}, 3072
s_add_u32 s{T}, s{T}, {CMB}
v_add_u32 v{vXr+1}, s{T}, v{vL16}
s_lshl_b32 s{sOF}, s{sQB}, 3
s_lshl_b32 s{T+1}, s{sQP}, 1
s_add_u32 s{sOF}, s{sOF}, s{T+1}
s_add_u32 s{sOF}, s{sOF}, s{sKH}
s_mul_i32 s{sOA}, s{sOF}, {NKS}
s_add_u32 s{sOA}, s{sOA}, s{sHEAD}
s_lshl_b32 s{sOA}, s{sOA}, 10
s_add_u32 s{sOA}, s{sOA}, {WS_AH}
s_lshl_b32 s{sOF}, s{sOF}, 5
s_add_u32 s{sOF}, s{sOF}, s{sHEAD}
s_lshl_b32 s{sOF}, s{sOF}, 2
s_add_u32 s{sOF}, s{sOF}, {FO}"""))
    for o in range(4):
        put(15 + (o >> 1) * 6, o & 1, txt(f"""s_xor_b32 s{T}, s{sWAVE}, {2*o}
s_and_b32 s{T+1}, s{T}, 1
s_mul_i32 s{T+1}, s{T+1}, 6144
s_and_b32 s{T+2}, s{T}, 2
s_and_b32 s{T}, s{T}, 4
s_lshl_b32 s{T}, s{T}, 1
s_add_u32 s{T}, s{T}, s{T+2}
s_lshl_b32 s{T}, s{T}, 13
s_add_u32 s{T}, s{T}, s{T+1}
s_add_u32 s{T}, s{T}, {max(o-1,0)*2048}
v_add_u32 v{vRd[o]}, s{T}, v{vL16}"""))
    seq(16, [kvdma(i) for i in range(13, 16)])
    seq(17, [w2dma(j, sl) for j, sl in zip(range(5, 9), (2, 3, 10, 11))], ph=1)
    seq(19, [hload(j) for j in range(5, 13)], ph=1)
    def warm():
        a(f"""v_and_b32 v{t0}, 7, v{vL}
v_lshlrev_b32 v{t0}, 10, v{t0}
v_lshrrev_b32 v{t1}, 3, v{vL}
v_lshl_add_u32 v{t0}, v{t1}, 14, v{t0}
buffer_load_dword v{vDum}, v{t0}, {WOR}, s{sWoA} offen"""); vm("warm")
    put(22, 0, warm)
    seq(24, [w2dma(j, sl) for j, sl in zip(range(9, 18), (4, 5, 12, 13, 16, 0, 1, 8, 9))], per=2)
    seq(26, [hload(j) for j in range(13, 18)], per=2, ph=1)
    seq(28, [w2dma(j, sl) for j, sl in zip(range(18, 22), (2, 3, 10, 11))] + [wodma(0, 14), wodma(1, 6)], per=2)
    seq(29, [hload(j) for j in range(18, 22)], ph=1)
    ffn = {16 + i: i for i in range(5)}; ffn.update({24 + i: 5 + i for i in range(8)})
    bars = {8: ["kv8", "w0"], 16: ["kv12", "w4"], 24: ["kv15", "w8"], 28: ["w17"]}
    lowp = {b - cfg.plow for b in bars} | {32 - cfg.plow}

    kb = [0]
    def koff(t):
        return t * 2048
    def rdK(b, t): a(f"ds_read_b128 {vr(vK[b],4)}, v{vAK} offset:{min(t, 31)*2048}")
    def rdV(b, t):
        t = min(t, 31)
        a(f"s_mov_b64 exec, s[{sEx}:{sEx+1}]")
        a(f"ds_read_b128 {vr(vV[b],4)}, v{vAV} offset:{t*2048+1024}")
        a(f"ds_read_b128 {vr(vV[b]+4,4)}, v{vAV} offset:{t*2048+1024+512}")
        a(f"s_mov_b64 exec, -1")
    def QK(sb, kb, j): a(f"v_mfma_f32_32x32x16_bf16 {vr(vS[sb],16)}, {vr(vK[kb],4)}, {vr(vQ[j],4)}, 0")
    def PV(j, vb, half, sb): a(f"v_smfmac_f32_32x32x32_bf16 {vr(vO[j],16)}, {vr(vV[vb]+4*half,4)}, {vr(vS[sb]+8*half,8)}, v{vIdx}")
    def E(sb, lo, hi):
        for r in range(lo, hi): a(f"v_exp_f32 v{vS[sb]+r}, v{vS[sb]+r}")
    a(f"ds_read_b128 {vr(vQ[0],4)}, v{t2}")
    rdK(0, 0)
    a(f"ds_read_b128 {vr(vQ[1],4)}, v{t2} offset:1024")
    rdV(0, 0); rdK(1, 1)
    a(f"s_setprio 3\nv_mov_b32 v{vIdx}, 0xdddddddd")
    for r in range(8): a(f"v_mov_b32 v{vV[1]+r}, v{t0}")
    a("s_waitcnt lgkmcnt(4)")
    QK(0, 0, 0)
    for j in range(2):
        for r in range(16): a(f"v_mov_b32 v{vO[j]+r}, 0")
    a("s_waitcnt lgkmcnt(0)\n.p2align 3")
    for kt in range(32):
        c = kt & 1; p = c ^ 1
        if kt in bars:
            a(vmwait(bars[kt])); stamp(a, cfg, f'pre{kt}'); a("s_barrier\ns_setprio 3"); stamp(a, cfg, f'post{kt}')
        if kt in lowp: a("s_setprio 2")
        fj = ffn.get(kt)
        E(0, 0, 2)
        if kt: PV(1, p, 1, 1)
        E(0, 2, 4)
        QK(1, c, 1)
        if kt < 31: rdV(p, kt + 1)
        if fj is not None: rdW(0, slot_of[fj])
        E(0, 4, 7)
        for f in ch.pop((kt, 0), []): f()
        E(0, 7, 10)
        PV(0, c, 0, 0); E(0, 10, 16)
        E(1, 0, 2); PV(0, c, 1, 0); E(1, 2, 4)
        a("s_waitcnt lgkmcnt(0)")
        if kt < 31: QK(0, p, 0)
        if kt < 30: rdK(c, kt + 2)
        E(1, 4, 7)
        if fj is not None:
            a(vmwait([f"h{fj}"])); mm1(0, HF + 4 * (fj % NH), 0)
        for f in ch.pop((kt, 1), []): f()
        E(1, 7, 10); PV(1, c, 0, 1); E(1, 10, 13)
        if fj is not None: mm1(0, HF + 4 * (fj % NH), 1)
        E(1, 13, 16)
    assert not ch, ch.keys()
    a(f"s_setprio 0\ns_cmp_eq_u32 s{sKH}, 0")
    PV(1, 1, 1, 1)
    a(f"s_cselect_b64 vcc, -1, 0\ns_nop 10")
    stamp(a, cfg, 'att1')
    snd = vS[0]; kp = vS[1]
    for r in range(9): a(f"v_cndmask_b32 v{snd+r}, v{vO[0]+r}, v{vO[1]+r}, vcc")
    for q in range(3): a(f"ds_write_b128 v{vXr}, {vr(snd+4*q,4)} offset:{q*1024}")
    for r in range(9): a(f"v_cndmask_b32 v{kp+r}, v{vO[1]+r}, v{vO[0]+r}, vcc")
    a("s_waitcnt vmcnt(0) lgkmcnt(0)"); stamp(a, cfg, 'precmb'); a("s_barrier"); stamp(a, cfg, 'cmb')
    for q in range(3): a(f"ds_read_b128 {vr(snd+4*q,4)}, v{vXr+1} offset:{q*1024}")
    st1 = hs([14, 15, 18, 19, 16, 17, 13])
    rdW(0, st1[0][0]); rdW(1, st1[1][0])
    a(f"""s_waitcnt lgkmcnt(8)
v_add_f32 v{kp+8}, v{kp+8}, v{snd+8}
v_rcp_f32 v{t0}, v{kp+8}""")
    for r in range(8): a(f"v_add_f32 v{kp+r}, v{kp+r}, v{snd+r}")
    for r in range(8): a(f"v_mul_f32 v{kp+r}, v{kp+r}, v{t0}")
    for r in range(4): a(f"v_cvt_pk_bf16_f32 v{snd+r}, v{kp+2*r}, v{kp+2*r+1}")
    a(f"buffer_store_dwordx4 {vr(snd,4)}, v{vL16}, {WSR}, s{sOA} offen sc1")
    stamp(a, cfg, 'ost')
    for i, sl in zip(range(2, 8), (7, 4, 5, 15, 12, 13)): wodma(i, sl)()
    def poll(): a(f"buffer_load_dword v{vPoll}, v{vPo}, {WSR}, s{sOP} offen sc1")
    def oloads():
        for j in range(8):
            if j == 4: a(f"s_add_u32 s{sOL}, s{sOL}, 4096")
            a(f"buffer_load_dwordx4 {vr(OF+4*j,4)}, v{vL16}, {WSR}, s{sOL} offen offset:{(j%4)*1024} sc1")
    def opub():
        a("s_waitcnt vmcnt(6)")
        flag_store(a, t0, t1, sOF)
        stamp(a, cfg, 'opub')
    run(st1, pre=False, hooks={cfg.opubs: opub})
    Lsk = a.label("p3sk"); Lo = a.label("pollo")
    d = 65536 - base[0]
    a(f"v_add_u32 v{vWa}, {d & 0xffffffff:#x}, v{vWa}\nv_add_u32 v{vWa2}, {d & 0xffffffff:#x}, v{vWa2}"); base[0] = 65536
    a(f"s_cmp_eq_u32 s{sKQ}, 3\ns_cbranch_scc1 {Lsk}")
    run(hs([20, 21]))
    assert base[0] == 65536
    a(f"{Lsk}:"); stamp(a, cfg, 'ffn2')
    a(f"""s_cmp_eq_u32 s{sWAVE}, {cfg.opw}
s_cbranch_scc0 {Lo}_ok
{Lo}:""")
    poll()
    a(f"""s_waitcnt vmcnt(0)
v_cmp_eq_u32 vcc, 1, v{vPoll}
s_cmp_eq_u64 vcc, exec
s_cbranch_scc1 {Lo}_ok
s_sleep {cfg.osl}
s_branch {Lo}
{Lo}_ok:
s_waitcnt vmcnt(1)""")
    stamp(a, cfg, 'opoll')
    a("s_barrier"); stamp(a, cfg, 'B3')
    oloads()
    run([(slot_of[100 + i], OF + 4*i) for i in range(8)], vmo=True)
    a("s_nop 11"); stamp(a, cfg, 'wo')
    for o in range(1, 4):
        for q in range(2): a(f"ds_write_b128 v{vRd[o]}, {vr(ACC+8*o+4*q,4)} offset:{q*1024}")
    for r in range(8): a(f"v_add_f32 v{ACC+r}, v{ACC+r}, v{XB+r}")
    a("s_waitcnt lgkmcnt(0)\ns_barrier")
    RB = vS[0]
    for q in range(6): a(f"ds_read_b128 {vr(RB+4*q,4)}, v{vRd[0]} offset:{q*1024}")
    for o in range(3):
        a(f"s_waitcnt lgkmcnt({4-2*o})")
        for r in range(8): a(f"v_add_f32 v{ACC+r}, v{ACC+r}, v{RB+8*o+r}")
    for r in range(4): a(f"v_cvt_pk_bf16_f32 v{vXr+r}, v{ACC+2*r}, v{ACC+2*r+1}")
    a(f"s_nop 1\nv_permlane32_swap_b32 v{vXr}, v{vXr+2}\nv_permlane32_swap_b32 v{vXr+1}, v{vXr+3}")
    a(f"buffer_store_dwordx4 {vr(vXr,4)}, v{vOut}, s[{sOUT}:{sOUT+3}], 0 offen {cfg.outsc}"); stamp(a, cfg, 'fst')
    return R.hi

def build_fused(cfg):
    a = Asm()
    a(f"""s_cmp_ge_u32 s{sWG}, 256
s_cbranch_scc1 L_end
s_load_dwordx16 s[{sARG}:{sARG+15}], s[0:1], 0
s_load_dwordx4 s[{sARG+16}:{sARG+19}], s[0:1], 64
s_load_dwordx2 s[{sARG+20}:{sARG+21}], s[0:1], 80""")
    if cfg.ts:
        for i in range(16): a(f"s_mov_b32 s{sTS+i}, 0")
    stamp(a, cfg, 'start')
    a(f"""v_lshrrev_b32 v2, 6, v0
v_and_b32 v1, 63, v0
v_readfirstlane_b32 s{sWAVE}, v2""")
    PS = PollStage(a, cfg)
    h1 = phase1(a, cfg, "L_p2h", "L_p2c", PS.emit)
    h2 = phase23(a, cfg, "L_p2h", "L_p2c", PS)
    if cfg.ts:
        a("s_waitcnt vmcnt(0)")
        stamp(a, cfg, 'end')
        stamps_out(a, cfg, 8)
    a("L_end:\ns_endpgm")
    hi = max(h1, h2)
    hdr = open("cdna_kernels/" + NAME[:-7] + ".s.ref").read().split("; Override launch")[0] if not cfg.ts else ""
    if cfg.ts: launch = f"; @launch kernel={NAME} grid=(256,1,1) block=(512,1,1) lds=163840\n"
    else: launch = "; @launch grid=(256,1,1) block=(512,1,1) lds=163840\n"
    pad = ".fill 8192, 4, 0xbf800000\n"
    txt = hdr + launch + ".amdgcn_target \"amdgcn-amd-amdhsa--gfx950\"\n.text\n" + f".globl {NAME}\n.p2align 8\n.type {NAME},@function\n{NAME}:\n" + a.text() + pad
    return txt + ".section .rodata,\"a\"\n.p2align 6\n" + kernel_desc(NAME, hi)

if __name__ == "__main__":
    print(build_fused(Cfg(**eval(sys.argv[1] if len(sys.argv) > 1 else "{}"))))
```

```python
import sys, struct
from asmlib import *

WS_Q  = 0
WS_KV = 2 << 20
WS_FL = 7 << 20
FQ, FH, FO = WS_FL, WS_FL + 4096, WS_FL + 8192
FL_BYTES = 16384
WS_AH = 8 << 20
WS_TS = 0xF80000
WS_SIZE = 16 << 20
NKS = 118
LOG2E = 1.4426950408889634
def f2u(x): return struct.unpack("<I", struct.pack("<f", x))[0]
NAME = "parallel_sum__softmax_full_mha__dense_activation_gelu__prompt_kernel"

sWG = 2
sX, sW, sWS, sB1, sWO, sOUT, sDBG = 8, 12, 16, 20, 24, 28, 32
sW2, sB2 = sW, sB1
sARG = 36
sWAVE = 58
sRB, sKIND, sNB, sHW = 59, 60, 61, 62
sHEAD, sQB, sQP, sKH = 59, 60, 61, 62
sKQ, sH3, sW3, sM3, sWo3 = 63, 4, 5, 6, 7
sHFL = 3
T = 64
sTS = 86
WSR = f"s[{sWS}:{sWS+3}]"

class Cfg:
    def __init__(self, **kw):
        self.ts = False; self.clk = False; self.rot = 6; self.codepf = True; self.nostats = False
        self.fused = True; self.slow = False; self.pubg = 6; self.pubchk = []; self.opubs = 3; self.hpk = 10; self.w2pf = 7; self.wopf = 15; self.w1pf = 0; self.nocs = False; self.m16 = False; self.nofree = False; self.outsc = ''; self.plow = 2; self.hprio = 2; self.csv = False; self.w1mode = 1; self.qpk = True; self.names = ['start', 'A_end', 'p2in', 'att0', 'att1', 'opub', 'opoll', 'end']; self.p1sc = 'sc1'; self.qsl = 1; self.osl = 2; self.opw = 6
        self.__dict__.update(kw)

def srd(a, d, lo, size):
    a(f"s_mov_b32 s{d}, s{lo}\ns_mov_b32 s{d+1}, s{lo+1}\ns_mov_b32 s{d+2}, {size:#x}\ns_mov_b32 s{d+3}, 0x20000")
def stamp(a, cfg, name):
    if name not in cfg.names: return
    i = cfg.names.index(name)
    if cfg.ts: a(f"{'s_memtime' if cfg.clk else 's_memrealtime'} s[{sTS+2*i}:{sTS+2*i+1}]")
def cstamp(a, cfg, name, sreg, val):
    if name not in cfg.names or not cfg.ts: return
    L = a.label("cs_")
    a(f"s_cmp_eq_u32 s{sreg}, {val}\ns_cbranch_scc0 {L}")
    stamp(a, cfg, name)
    a(f"{L}:")
def stamps_out(a, cfg, n):
    if not cfg.ts: return
    a("s_waitcnt lgkmcnt(0)")
    for i in range(n): a(f"v_writelane_b32 v1, s{sTS+2*i}, {i}")
    a(f"""s_lshl_b32 s{T}, s{sWG}, 3
s_add_u32 s{T}, s{T}, s{sWAVE}
s_lshl_b32 s{T}, s{T}, 5
s_add_u32 s{T}, s{T}, {WS_TS:#x}
v_mbcnt_lo_u32_b32 v2, -1, 0
v_lshlrev_b32 v2, 2, v2
s_mov_b64 exec, 0xff
buffer_store_dword v1, v2, {WSR}, s{T} offen
s_mov_b64 exec, -1""")

def P(r): return vr(r, 2)
vL = 1

def sp_ones(a, vA, vI, tmp):
    a(f"""v_and_b32 v{tmp}, 2, v{vL}
v_cmp_eq_u32 vcc, 0, v{tmp}
v_mov_b32 v{vI}, 0x3f803f80
v_and_b32 v{tmp}, 1, v{vL}
v_cndmask_b32 v{vA}, 0, v{vI}, vcc
v_cndmask_b32 v{vA+1}, 0, v{vI}, vcc
v_cndmask_b32 v{vA+2}, v{vI}, 0, vcc
v_cndmask_b32 v{vA+3}, v{vI}, 0, vcc
v_mul_u32_u24 v{vI}, 0xaaaa, v{tmp}
v_add_u32 v{vI}, 0x4444, v{vI}""")
def spsum(d, vA, B, vI): return f"v_smfmac_f32_16x16x64_bf16 {vr(d,4)}, {vr(vA,4)}, {vr(B,8)}, v{vI}"

def flag_store(a, vtmp, vtmp2, soff):
    a(f"""v_mov_b32 v{vtmp}, 1
v_mov_b32 v{vtmp2}, 0
s_mov_b64 exec, 1
buffer_store_dword v{vtmp}, v{vtmp2}, {WSR}, s{soff} offen sc1
s_mov_b64 exec, -1""")

STG = 28672
NST = 3
W1L = [86016 + 12288 * i for i in range(5)] + [20480 + 12288 * i for i in range(3)]
SCR = 147456
AFM, VSM, LCN, LFR = SCR, 57344, SCR + 3072, SCR + 3088
QST = 19 * 8192
sCB = 60
sFP = 61
def phase1(a, cfg, Lp2h, Lp2c, poll_and_stage):
    Lc = a.label("p1c")
    a(f"""s_and_b32 s{T}, s{sWG}, 3
s_lshl_b32 s{T}, s{T}, 2
s_bfe_u32 s{T+1}, s{sWG}, 0x20003
s_add_u32 s{sRB}, s{T}, s{T+1}
s_lshr_b32 s{T+1}, s{sWG}, 5
s_and_b32 s{T}, s{sWG}, 4
s_lshl_b32 s{T}, s{T}, 1
s_add_u32 s{sCB}, s{T}, s{T+1}
s_mul_i32 s{sFP}, s{sCB}, 3
s_lshl_b32 s{T}, s{sCB}, 1
s_add_u32 s{T}, s{T}, 11
s_min_u32 s{sFP}, s{sFP}, s{T}
s_and_b32 s{sHW}, s{sWAVE}, 3
s_cmp_lt_u32 s{sWAVE}, 4
s_cbranch_scc1 {Lc}""")
    R = Regs(16)
    t0, t1, t2, t3 = R.alloc(), R.alloc(), R.alloc(), R.alloc()
    vXg = [R.alloc(), R.alloc()]
    vWg = [R.alloc() for _ in range(3)]; vW1g = [R.alloc() for _ in range(3)]
    vWa = R.alloc(); vB1 = R.alloc(); vRdy = R.alloc(); vAw = R.alloc(); vZ = R.alloc()
    vSI = R.alloc(); vSA = R.alloc(4, 4)
    vCs = [R.alloc(4, 4)]
    FW = R.alloc(32, 4); AF = R.alloc(4, 4)
    sXoff, sWoff, sM0x, sM0w, sCh, sCnt, sDlt, sStage, sCh0, sW1 = T + 8, T + 9, T + 10, T + 11, T + 12, T + 13, T + 14, T + 15, T + 16, sWO
    a(f"""s_lshl_b32 s{T}, s{sRB}, 1
s_add_u32 s{sCh}, s{T}, s{T+1}
s_and_b32 s{sCh}, s{sCh}, {cfg.rot}
v_lshrrev_b32 v{t0}, 3, v{vL}
v_lshrrev_b32 v{t1}, 4, v{vL}
v_and_b32 v{t2}, 7, v{vL}
v_xor_b32 v{t2}, v{t2}, v{t1}
v_lshlrev_b32 v{t2}, 4, v{t2}
v_lshl_add_u32 v{vXg[0]}, v{t0}, 10, v{t2}
v_xor_b32 v{vXg[1]}, 64, v{vXg[0]}
v_add_u32 v{vXg[1]}, 0x2000, v{vXg[1]}
s_lshl_b32 s{sXoff}, s{sRB}, 17
s_lshl_b32 s{T}, s{sHW}, 15
s_add_u32 s{sXoff}, s{sXoff}, s{T}
s_lshl_b32 s{sM0x}, s{sHW}, 12
s_mov_b32 s{sCh0}, s{sCh}""")
    for i in range(3):
        a(f"""v_add_u32 v{t0}, {64*i}, v{vL}
v_mul_u32_u24 v{t1}, 0x556, v{t0}
v_lshrrev_b32 v{t1}, 14, v{t1}
v_mul_u32_u24 v{t2}, {3072 - 192}, v{t1}
v_lshl_add_u32 v{vWg[i]}, v{t0}, 4, v{t2}
v_mul_u32_u24 v{t2}, {2752 - 192}, v{t1}
v_lshl_add_u32 v{vW1g[i]}, v{t0}, 4, v{t2}""")
    a(f"""s_mul_i32 s{sWoff}, s{sCB}, 192
s_mul_i32 s{T}, s{sHW}, {16*3072}
s_add_u32 s{sWoff}, s{sWoff}, s{T}
s_mul_i32 s{sM0w}, s{sHW}, 3072
s_mov_b32 s{sX+2}, {2048*1024}
s_mov_b32 s{sX+3}, 0x20000
s_mov_b32 s{sW+2}, {512*3072}
s_mov_b32 s{sW+3}, 0x20000
s_mov_b32 s{sStage}, 0
s_mov_b32 s{sCnt}, 0
s_waitcnt lgkmcnt(0)
s_mov_b32 s{sX}, s{sARG}
s_mov_b32 s{sX+1}, s{sARG+1}
s_mov_b32 s{sW}, s{sARG+2}
s_mov_b32 s{sW+1}, s{sARG+3}""")
    stamp(a, cfg, 'karg')
    def dma_groups():
        g = []
        X = f"s[{sX}:{sX+3}]"; W = f"s[{sW}:{sW+3}]"
        g.append(f"s_lshl_b32 s{T}, s{sCh}, 7\ns_add_u32 s{T}, s{T}, s{sXoff}\ns_add_u32 m0, s{sM0x}, s{sStage}\ns_mul_i32 s{T+1}, s{sCh}, {64*3072}\nbuffer_load_dwordx4 v{vXg[0]}, {X}, s{T} offen lds")
        g.append(f"s_add_u32 m0, m0, 1024\ns_add_u32 s{T+1}, s{T+1}, s{sWoff}\nbuffer_load_dwordx4 v{vXg[1]}, {X}, s{T} offen lds")
        g.append(f"s_add_u32 m0, m0, 1024\ns_add_u32 s{T}, s{T}, 0x4000\nbuffer_load_dwordx4 v{vXg[0]}, {X}, s{T} offen lds")
        g.append(f"s_add_u32 m0, m0, 1024\ns_add_u32 s{T+2}, s{sM0w}, s{sStage}\nbuffer_load_dwordx4 v{vXg[1]}, {X}, s{T} offen lds")
        g.append(f"s_add_u32 m0, s{T+2}, 16384\ns_add_u32 s{sCh}, s{sCh}, 1\nbuffer_load_dwordx4 v{vWg[0]}, {W}, s{T+1} offen lds")
        g.append(f"s_add_u32 m0, m0, 1024\ns_and_b32 s{sCh}, s{sCh}, 7\nbuffer_load_dwordx4 v{vWg[1]}, {W}, s{T+1} offen lds")
        g.append(f"s_add_u32 m0, m0, 1024\ns_nop 0\nbuffer_load_dwordx4 v{vWg[2]}, {W}, s{T+1} offen lds")
        return g
    def w1dma(i):
        W = f"s[{sW1}:{sW1+3}]"
        a(f"""s_add_u32 s{T}, s{sCh0}, {i}
s_and_b32 s{T}, s{T}, 7
s_mul_i32 s{T}, s{T}, {64*2752}
s_add_u32 m0, s{sM0w}, {W1L[i]}
s_add_u32 s{T}, s{T}, s{sWoff}
buffer_load_dwordx4 v{vW1g[0]}, {W}, s{T} offen lds
s_add_u32 m0, m0, 1024
s_nop 0
buffer_load_dwordx4 v{vW1g[1]}, {W}, s{T} offen lds
s_add_u32 m0, m0, 1024
s_nop 0
buffer_load_dwordx4 v{vW1g[2]}, {W}, s{T} offen lds""")
    for g in dma_groups(): a(g)
    stamp(a, cfg, 'dma0')
    srd(a, sB1, sARG + 10, 2752)
    a(f"""s_min_u32 s{T+2}, s{sHW}, 2
s_lshl_b32 s{T+2}, s{T+2}, 6
s_lshl_b32 s{T}, s{sFP}, 6
s_add_u32 s{T}, s{T}, s{T+2}
v_and_b32 v{t0}, 31, v{vL}
v_lshlrev_b32 v{t1}, 1, v{t0}
buffer_load_ushort v{vB1}, v{t1}, s[{sB1}:{sB1+3}], s{T} offen
s_lshl_b32 s{T}, s{T+2}, 3
s_add_u32 s{T}, s{T}, {AFM}
v_lshl_add_u32 v{vAw}, v{t0}, 4, s{T}
v_lshrrev_b32 v{t0}, 5, v{vL}
v_bfe_u32 v{t1}, v{vL}, 2, 2
v_lshl_add_u32 v{t0}, v{t0}, 2, v{t1}
v_mul_u32_u24 v{t0}, 192, v{t0}
v_bfe_u32 v{t1}, v{vL}, 4, 1
v_lshl_add_u32 v{t0}, v{t1}, 5, v{t0}
v_and_b32 v{t1}, 3, v{vL}
v_lshl_add_u32 v{t0}, v{t1}, 3, v{t0}
s_add_u32 s{T+2}, s{T+2}, 16384
v_add_u32 v{vWa}, s{T+2}, v{t0}
v_mov_b32 v{vZ}, 0""")
    sp_ones(a, vSA, vSI, t0)
    for r in [c+i for c in vCs for i in range(4)]: a(f"v_mov_b32 v{r}, 0")
    srd(a, sWS, sARG + 20, WS_SIZE)
    srd(a, sDBG, sARG + 18, 256)
    srd(a, sW1, sARG + 8, 512 * 2752)
    a(f"s_mov_b32 s{sStage}, {STG}\nv_mov_b32 v{t3}, {LCN}\nds_write_b32 v{t3}, v{vZ}\nds_write_b32 v{t3}, v{vZ} offset:4")
    if cfg.hprio: a(f"s_setprio {cfg.hprio}")
    for g in dma_groups(): a(g)
    stamp(a, cfg, 'dma1')
    a(f"s_mov_b32 s{sStage}, {2*STG}")
    def rds(off=0, b=0): return [f"ds_read_b64_tr_b16 {vr(FW + 16*b + 2*q,2)}, v{vWa} offset:{off + q*1536}" for q in range(8)]
    def m4b(b): return [spsum(vCs[0], vSA, FW + 16*b + 8*q, vSI) for q in range(2)]
    m4s = [] if cfg.nocs else m4b(0)
    def af_out(off, bias):
        a(f"""v_and_b32 v{t1}, 16, v{vL}
v_cmp_eq_u32 vcc, 0, v{t1}
v_mov_b32 v{AF+2}, {'v%d' % vB1 if bias else 0}
v_mov_b32 v{AF+3}, 0
s_nop 3
v_add_f32 v{vCs[0]}, v{vCs[0]}, v{vCs[0]+1}
v_add_f32 v{vCs[0]+2}, v{vCs[0]+2}, v{vCs[0]+3}
v_cndmask_b32 v{vCs[0]}, v{vCs[0]+2}, v{vCs[0]}, vcc
v_cvt_pk_bf16_f32 v{AF}, v{vCs[0]}, v{vCs[0]}
v_and_b32 v{t1}, 0xffff0000, v{AF}
v_sub_f32 v{t1}, v{vCs[0]}, v{t1}
v_cvt_pk_bf16_f32 v{t1}, v{t1}, 0
v_lshl_or_b32 v{AF+1}, v{AF+2}, 16, v{t1}
ds_write_b128 v{vAw}, {vr(AF,4)} offset:{off}""")
    Lp = a.label("hloop"); Lw2 = a.label("hw"); Lnd = a.label("hnd"); Lnx = a.label("hnx")
    a(f"""s_waitcnt vmcnt(8)
s_branch {Lw2}_b
.p2align 3
{Lp}:""")
    cstamp(a, cfg, 'hA', sCnt, 4); cstamp(a, cfg, 'hG', sCnt, 5)
    a(f"""s_cmp_lt_u32 s{sCnt}, 7
s_cbranch_scc1 {Lw2}
s_waitcnt vmcnt(10)
s_branch {Lw2}_b
{Lw2}:
s_waitcnt vmcnt(7)
{Lw2}_b:""")
    cstamp(a, cfg, 'hB', sCnt, 4)
    a("s_barrier")
    cstamp(a, cfg, 'hC', sCnt, 4)
    a(f"""s_cmp_lt_u32 s{sCnt}, 6
s_cbranch_scc0 {Lnd}
{Lnd}_go:""")
    cstamp(a, cfg, 'hD', sCnt, 4)
    rr = [] if cfg.nocs else rds()
    for i, g in enumerate(dma_groups()):
        a(g)
        if i < 4:
            for l in rr[2*i:2*i+2]: a(l)
    cstamp(a, cfg, 'hE', sCnt, 4)
    a(f"s_branch {Lnx}\n{Lnd}:")
    for l in rr: a(l)
    a(f"s_cmp_eq_u32 s{sCnt}, 6\ns_cbranch_scc0 {Lnd}_7")
    a(f"""buffer_load_dword v{vRdy}, v{vZ}, s[{sDBG}:{sDBG+3}], 0 offen sc1
s_lshl_b32 s{sWoff}, s{sFP}, 6
s_mul_i32 s{T}, s{sHW}, {16*2752}
s_add_u32 s{sWoff}, s{sWoff}, s{T}""")
    for i in range(3): w1dma(i)
    a(f"s_branch {Lnx}\n{Lnd}_7:")
    if cfg.w1mode == 0:
        for i in range(3, 5): w1dma(i)
    a(f"""{Lnx}:
s_add_u32 s{sCnt}, s{sCnt}, 1
s_add_u32 s{sStage}, s{sStage}, {STG}
s_cmp_eq_u32 s{sStage}, {NST*STG}
s_cselect_b32 s{sStage}, 0, s{sStage}
s_mov_b32 s{sDlt}, {STG}
s_cmp_eq_u32 s{sStage}, {(NST-1)*STG}
s_cmov_b32 s{sDlt}, {(-(NST-1)*STG) & 0xffffffff:#x}
s_waitcnt lgkmcnt(0)""")
    for l in m4s: a(l)
    a(f"v_add_u32 v{vWa}, s{sDlt}, v{vWa}\ns_cmp_lt_u32 s{sCnt}, 8\ns_cbranch_scc1 {Lp}")
    af_out(0, False)
    Lr = a.label("rdy")
    a(f"""s_waitcnt vmcnt({ {0: 9, 1: 3, 3: 0}[cfg.w1mode] })
{Lr}:
v_readfirstlane_b32 s{T}, v{vRdy}
s_cmp_lg_u32 s{T}, 0
s_cbranch_scc1 {Lr}_ok
s_sleep 1
buffer_load_dword v{vRdy}, v{vZ}, s[{sDBG}:{sDBG+3}], 0 offen sc1
s_waitcnt vmcnt(0)
s_branch {Lr}
{Lr}_ok:
s_waitcnt lgkmcnt(0)
s_barrier""")
    stamp(a, cfg, 'A_end')
    a(f"v_add_u32 v{vWa}, {(W1L[0] - 16384 - 2*STG) & 0xffffffff:#x}, v{vWa}")
    for r in [c+i for c in vCs for i in range(4)]: a(f"v_mov_b32 v{r}, 0")
    def cs(idx, basev):
        L = a.label("cs")
        a(f"s_cmp_eq_u32 s{sWAVE}, 7\ns_cbranch_scc1 {L}")
        for l in rds(W1L[idx[0]] - basev, 0)[:7]: a(l)
        for n, i in enumerate(idx):
            a(rds(W1L[i] - basev, n & 1)[7])
            if n + 1 < len(idx):
                for l in rds(W1L[idx[n+1]] - basev, (n + 1) & 1)[:7]: a(l)
                a("s_waitcnt lgkmcnt(7)")
            else: a("s_waitcnt lgkmcnt(0)")
            for l in m4b(n & 1): a(l)
        a(f"{L}:")
    cs([0, 1], W1L[0])
    if cfg.w1mode == 3:
        for i in range(3, 5): w1dma(i)
        cs([2], W1L[0])
        for i in range(5, 8): w1dma(i)
        a("s_waitcnt vmcnt(9)\ns_barrier")
        cs([3, 4], W1L[0])
    elif cfg.w1mode == 0:
        for i in range(5, 8): w1dma(i)
        a("s_waitcnt vmcnt(9)"); stamp(a, cfg, 'preB8'); a("s_barrier"); stamp(a, cfg, 'postB8')
        cs([2, 3, 4], W1L[0])
    else:
        for i in range(3, 5): w1dma(i)
        a("s_waitcnt vmcnt(6)\ns_barrier")
        for i in range(5, 8): w1dma(i)
        cs([2], W1L[0])
        a("s_waitcnt vmcnt(9)\ns_barrier")
        cs([3, 4], W1L[0])
    a(f"v_add_u32 v{vWa}, {(W1L[5] - W1L[0]) & 0xffffffff:#x}, v{vWa}")
    poll_and_stage("ids")
    a("s_waitcnt vmcnt(0)"); stamp(a, cfg, 'preB20'); a("s_barrier"); stamp(a, cfg, 'postB20')
    L7 = a.label("h7")
    a(f"s_cmp_eq_u32 s{sWAVE}, 7\ns_cbranch_scc1 {L7}")
    cs([5, 6, 7], W1L[5])
    af_out(1536, True)
    a(f"""v_mov_b32 v{t0}, 1
s_waitcnt lgkmcnt(0)
s_mov_b64 exec, 1
ds_add_u32 v{t3}, v{t0}
s_mov_b64 exec, -1
{L7}:""")
    stamp(a, cfg, 'B_end')
    a(f"s_branch {Lp2h}")
    hi1 = R.hi
    a(f"{Lc}:")
    R = Regs(2)
    t0, t1, t2, t3 = R.alloc(), R.alloc(), R.alloc(), R.alloc()
    assert t2 % 2 == 0
    vXa = [R.alloc() for _ in range(4)]
    vWa = R.alloc(); vL16 = R.alloc(); vVw = R.alloc(); vVr = R.alloc(); vAa = R.alloc(); vDum = R.alloc(); vVw2 = R.alloc(); vSI = R.alloc()
    vRS = R.alloc(2, 2); vK = R.alloc(2, 2); vSA = R.alloc(4, 4)
    vSt = R.alloc(4, 4); vSq = R.alloc(4, 4); vBF = R.alloc(4, 4); vSq2 = R.alloc(4, 4); vSq3 = vBF
    FB = R.alloc(36, 4)
    FWc = lambda b, p: FB + 12 * b + 4 * p
    ACC = [R.alloc(16, 4) for _ in range(3)]
    X = R.alloc(128, 4)
    if cfg.codepf:
        a(f"""s_getpc_b64 s[{T}:{T+1}]
s_and_b32 s{T}, s{T}, 0xffffff00
v_lshlrev_b32 v{t0}, 7, v0
global_load_dword v{vDum}, v{t0}, s[{T}:{T+1}]""")
    a(f"v_lshlrev_b32 v{vL16}, 4, v{vL}\ns_waitcnt lgkmcnt(0)")
    srd(a, sWS, sARG + 20, WS_SIZE)
    Lncl = a.label("nclr")
    a(f"""s_or_b32 s{T}, s{sWG}, s{sWAVE}
s_cmp_eq_u32 s{T}, 0
s_cbranch_scc0 {Lncl}""")
    srd(a, sDBG, sARG + 18, 256)
    for r in range(4): a(f"v_mov_b32 v{FB+4+r}, 0")
    a(f"s_mov_b32 s{T}, {WS_FL}")
    for i in range(FL_BYTES // 1024):
        if i % 4 == 0 and i: a(f"s_add_u32 s{T}, s{T}, 4096")
        a(f"buffer_store_dwordx4 {vr(FB+4,4)}, v{vL16}, {WSR}, s{T} offen offset:{(i%4)*1024} sc1")
    a(f"""v_mov_b32 v{t0}, 1
s_waitcnt vmcnt(0)
s_mov_b64 exec, 1
buffer_store_dword v{t0}, v{FB+4}, s[{sDBG}:{sDBG+3}], 0 offen sc1
s_mov_b64 exec, -1
{Lncl}:
v_and_b32 v{t0}, 31, v{vL}
v_lshrrev_b32 v{t1}, 5, v{vL}
v_bfe_u32 v{t2}, v{vL}, 1, 3
v_xor_b32 v{t2}, v{t2}, v{t1}
v_lshlrev_b32 v{t2}, 4, v{t2}
v_lshl_add_u32 v{t2}, v{t0}, 7, v{t2}
s_lshl_b32 s{T}, s{sWAVE}, 12
v_add_u32 v{vXa[0]}, s{T}, v{t2}""")
    for j in range(1, 4): a(f"v_xor_b32 v{vXa[j]}, {32*j}, v{vXa[0]}")
    a(f"""v_lshlrev_b32 v{vAa}, 4, v{t0}
v_add_u32 v{vAa}, {AFM}, v{vAa}
v_lshlrev_b32 v{t0}, 5, v{t0}
v_lshl_add_u32 v{t0}, v{t1}, 3, v{t0}
s_mul_i32 s{T}, s{sWAVE}, 6144
s_add_u32 s{T}, s{T}, {VSM}
v_add_u32 v{vVw}, s{T}, v{t0}
v_lshrrev_b32 v{t0}, 4, v{vL}
v_bfe_u32 v{t2}, v{vL}, 2, 2
v_lshl_add_u32 v{t0}, v{t0}, 3, v{t2}
v_and_b32 v{t3}, 3, v{vL}
v_lshlrev_b32 v{t3}, 3, v{t3}
v_lshl_add_u32 v{t0}, v{t0}, 5, v{t3}
v_add_u32 v{vVr}, s{T}, v{t0}
v_lshl_add_u32 v{t0}, v{t1}, 3, v{t2}
v_mul_u32_u24 v{t0}, 192, v{t0}
v_bfe_u32 v{t1}, v{vL}, 4, 1
v_lshlrev_b32 v{t1}, 5, v{t1}
v_add3_u32 v{vWa}, v{t0}, v{t1}, v{t3}""")
    sp_ones(a, vSA, vSI, t0)
    for i in range(4): a(f"v_mov_b32 v{vSt+i}, 0\nv_mov_b32 v{vSq+i}, 0\nv_mov_b32 v{vSq3+i}, 0\nv_mov_b32 v{vSq2+i}, 0")
    srd(a, sWO, sARG + 8, 512 * 2752)
    a(f"""s_and_b32 s{T}, s{sRB}, 3
s_lshl_b32 s{T}, s{T}, 2
s_add_u32 s{T}, s{T}, s{sWAVE}
s_mul_i32 s{T}, s{T}, {32*2752}
s_lshl_b32 s{T+1}, s{sFP}, 6
s_add_u32 s{T}, s{T}, s{T+1}
v_lshrrev_b32 v{t0}, 1, v{vL}
v_mul_u32_u24 v{t0}, 2752, v{t0}
v_and_b32 v{t1}, 1, v{vL}
v_mul_u32_u24 v{t1}, 188, v{t1}
v_add3_u32 v{vVw2}, v{t0}, v{t1}, s{T}""")
    sTT, sQA, sQF, sHA, sHF, sP0 = T + 6, T + 8, T + 14, T + 15, T + 16, T + 7
    a(f"""s_lshl_b32 s{sTT}, s{sRB}, 2
s_add_u32 s{sTT}, s{sTT}, s{sWAVE}
s_mul_i32 s{sP0}, s{sCB}, 3""")
    for p in range(3):
        a(f"""s_add_u32 s{T+2}, s{sP0}, {p}
s_and_b32 s{T+3}, s{T+2}, 15
s_lshl_b32 s{T+3}, s{T+3}, 7
s_add_u32 s{T+3}, s{T+3}, s{sTT}
s_cmp_lt_u32 s{T+2}, 16
s_cselect_b32 s{T+4}, 10, 11
s_cselect_b32 s{T+5}, {WS_Q}, {WS_KV}
s_lshl_b32 s{T+3}, s{T+3}, s{T+4}
s_add_u32 s{T+3}, s{T+3}, s{T+5}
s_lshl_b32 s{T+4}, 64, s{T+4}
s_cmp_ge_u32 s{T+2}, 32
s_cselect_b32 s{T+5}, 1024, 0
s_add_u32 s{sQA+2*p}, s{T+3}, s{T+5}
s_add_u32 s{sQA+2*p+1}, s{sQA+2*p}, s{T+4}""")
    a(f"""s_lshl_b32 s{sQF}, s{sCB}, 6
s_add_u32 s{sQF}, s{sQF}, s{sTT}
s_lshl_b32 s{sQF}, s{sQF}, 2
s_add_u32 s{sQF}, s{sQF}, {FQ}
s_lshl_b32 s{sHF}, s{sTT}, 4
s_add_u32 s{sHF}, s{sHF}, s{sCB}
s_lshl_b32 s{sHF}, s{sHF}, 2
s_add_u32 s{sHF}, s{sHF}, {FH}
s_mul_i32 s{sHA}, s{sTT}, {NKS}
s_lshl_b32 s{T}, s{sFP}, 1
s_add_u32 s{sHA}, s{sHA}, s{T}
s_add_u32 s{sHA}, s{sHA}, 32
s_lshl_b32 s{sHA}, s{sHA}, 10
s_add_u32 s{sHA}, s{sHA}, {WS_AH}""")
    wbase = [0]; xbase = [0]
    def reads(g, passA):
        c, ks = g >> 2, g & 3
        b = g % 3
        out = []
        wl = ((c % 3) * STG + 16384 if passA else W1L[c]) + ks * 3072
        if wl - wbase[0] < 0 or wl - wbase[0] + 1024 > 65535:
            nb = (c % 3) * STG if passA else W1L[c]
            out.append(f"v_add_u32 v{vWa}, {(nb - wbase[0]) & 0xffffffff:#x}, v{vWa}"); wbase[0] = nb
        if passA:
            out.append(f"ds_read_b128 {vr(X+4*g,4)}, v{vXa[ks]} offset:{(c % 3) * STG}")
        for p in range(3):
            out.append(f"ds_read_b64_tr_b16 {vr(FWc(b,p),2)}, v{vWa} offset:{wl - wbase[0] + p*64}")
            out.append(f"ds_read_b64_tr_b16 {vr(FWc(b,p)+2,2)}, v{vWa} offset:{wl - wbase[0] + p*64 + 768}")
        return out
    m4 = lambda d, A, B: f"v_mfma_f32_4x4x4_16b_bf16 {vr(d,4)}, {vr(A,2)}, {vr(B,2)}, {vr(d,4)}"
    def burst(gs):
        if cfg.nostats: return
        gs = list(gs)
        for g in gs[::2]: a(spsum(vSt, vSA, X + 4 * g, vSI))
        k = 0
        for g in gs:
            for h in (0, 2):
                x = X + 4 * g + h
                a(m4([vSq, vSq2, vSq3][k % 3], x, x)); k += 1
    def gemm(passA, bars, hooks, tail=None):
        nrd = 7 if passA else 6
        for g in (0, 1):
            for l in reads(g, passA): a(l)
        for g in range(32):
            if g in hooks: hooks[g]()
            nxt = []
            extra = 0
            if g + 2 < 32:
                if g + 2 in bars:
                    if passA:
                        burst(range(max(0, g - 4), g))
                        a("s_waitcnt lgkmcnt(0)")
                    stamp(a, cfg, f"pre{'A' if passA else 'B'}{g+2}")
                    a("s_barrier")
                    stamp(a, cfg, f"post{'A' if passA else 'B'}{g+2}")
                nxt = reads(g + 2, passA)
            a(f"s_waitcnt lgkmcnt({nrd + extra if g + 1 < 32 else 0})")
            if passA and g == 31: burst(range(26, 32))
            x = X + 4 * g
            n = len(nxt)
            for p in range(3):
                c = "0" if g == 0 else vr(ACC[p], 16)
                if cfg.m16:
                    for q in range(2):
                        qq = 4 * (2 * (g & 1) + q)
                        a(f"v_mfma_f32_16x16x32_bf16 {vr(ACC[p]+qq,4)}, {vr(FWc(g % 3,p),4)}, {vr(X + 4*(g ^ q),4)}, {'0' if g < 2 else vr(ACC[p]+qq,4)}")
                else: a(f"v_mfma_f32_32x32x16_bf16 {vr(ACC[p],16)}, {vr(FWc(g % 3,p),4)}, {vr(x,4)}, {c}")
                for l in nxt[p*n//3:(p+1)*n//3]: a(l)

    stamp(a, cfg, 'karg')
    a("s_waitcnt lgkmcnt(0)\ns_barrier")
    stamp(a, cfg, 'bar0')
    def w1warm():
        a(f"buffer_load_dword v{vDum}, v{vVw2}, s[{sWO}:{sWO+3}], 0 offen")
    gemm(True, {4 * c for c in range(1, 8)}, {cfg.w1pf: w1warm} if cfg.w1pf else {})
    vM, vQ2, vSd, vRs = vSq, vSq+1, vRS+1, vRS
    BF = vBF
    a(f"""v_and_b32 v{t0}, 3, v{vL}
v_cmp_eq_u32 vcc, 1, v{t0}
v_cmp_eq_u32 s[{T}:{T+1}], 2, v{t0}
v_cmp_eq_u32 s[{T+2}:{T+3}], 3, v{t0}
v_add_f32 v{vSq}, v{vSq}, v{vSq2}
v_add_f32 v{vSq+1}, v{vSq+1}, v{vSq2+1}
v_add_f32 v{vSq+2}, v{vSq+2}, v{vSq2+2}
v_add_f32 v{vSq+3}, v{vSq+3}, v{vSq2+3}
v_add_f32 v{vSq}, v{vSq}, v{vSq3}
v_add_f32 v{vSq+1}, v{vSq+1}, v{vSq3+1}
v_add_f32 v{vSq+2}, v{vSq+2}, v{vSq3+2}
v_add_f32 v{vSq+3}, v{vSq+3}, v{vSq3+3}
v_cndmask_b32 v{vSq2}, v{vSq}, v{vSq+1}, vcc
v_cndmask_b32 v{vSq2}, v{vSq2}, v{vSq+2}, s[{T}:{T+1}]
v_cndmask_b32 v{vSq2}, v{vSq2}, v{vSq+3}, s[{T+2}:{T+3}]
v_and_b32 v{t1}, 16, v{vL}
v_cmp_eq_u32 s[{T}:{T+1}], 0, v{t1}
v_mov_b32 v{vSq2+1}, v{vSq2}
v_cmp_gt_u32 vcc, 32, v{vL}
v_mov_b32 v{BF+3}, 0
v_add_f32 v{vSt}, v{vSt}, v{vSt+1}
v_add_f32 v{vSt+2}, v{vSt+2}, v{vSt+3}
v_permlane32_swap_b32 v{vSq2}, v{vSq2+1}
v_cndmask_b32 v{vM}, v{vSt+2}, v{vSt}, s[{T}:{T+1}]
v_add_f32 v{vQ2}, v{vSq2}, v{vSq2+1}
v_mul_f32 v{vM}, {f2u(-1.0/512):#x}, v{vM}
v_mul_f32 v{vQ2}, {f2u(1.0/512):#x}, v{vQ2}
v_fma_f32 v{vQ2}, -v{vM}, v{vM}, v{vQ2}
v_max_f32 v{vQ2}, 0, v{vQ2}
v_add_f32 v{vQ2}, {f2u(1e-5):#x}, v{vQ2}
v_rsq_f32 v{vRs}, v{vQ2}
v_cndmask_b32 v{vM}, 0, v{vM}, vcc
v_mul_f32 v{vSd}, v{vQ2}, v{vRs}
v_cvt_pk_bf16_f32 v{t0}, v{vM}, v{vM}
v_cndmask_b32 v{vQ2}, 0, v{vSd}, vcc
v_and_b32 v{t1}, 0xffff0000, v{t0}
v_sub_f32 v{t1}, v{vM}, v{t1}
v_cvt_pk_bf16_f32 v{BF}, v{vM}, v{t1}
v_cvt_pk_bf16_f32 v{BF+1}, v{vM}, v{vQ2}
v_and_b32 v{t1}, 0xffff0000, v{BF+1}
v_sub_f32 v{t1}, v{vQ2}, v{t1}
v_cvt_pk_bf16_f32 v{BF+2}, v{t1}, 0
v_mul_f32 v{vK}, {f2u(0.25*LOG2E):#x}, v{vRs}
s_barrier""")
    stamp(a, cfg, 'A_end')
    def rank1(off):
        for p in range(3): a(f"ds_read_b128 {vr(FB+4*p,4)}, v{vAa} offset:{off + 512*p}")
        for p in range(3):
            a(f"s_waitcnt lgkmcnt({2-p})")
            a(f"v_mfma_f32_32x32x16_bf16 {vr(ACC[p],16)}, {vr(FB+4*p,4)}, {vr(BF,4)}, {vr(ACC[p],16)}")
    rank1(0)
    a("s_nop 7")
    OB = FB + 12
    Lv = a.label("p1v"); Lq = a.label("p1q")
    a(f"s_cmp_ge_u32 s{sP0}, 32\ns_cbranch_scc1 {Lv}")
    def vwrite(o, off):
        a(f"""ds_write_b64 v{vVw}, {vr(o,2)} offset:{off}
ds_write_b64 v{vVw}, {vr(o+2,2)} offset:{off+16}
ds_write_b64 v{vVw}, {vr(o+4,2)} offset:{off+1024}
ds_write_b64 v{vVw}, {vr(o+6,2)} offset:{off+1040}""")
    def vread(o, off):
        a(f"""ds_read_b64_tr_b16 {vr(o,2)}, v{vVr} offset:{off}
ds_read_b64_tr_b16 {vr(o+2,2)}, v{vVr} offset:{off+128}
ds_read_b64_tr_b16 {vr(o+4,2)}, v{vVr} offset:{off+1024}
ds_read_b64_tr_b16 {vr(o+6,2)}, v{vVr} offset:{off+1152}""")
    def vstore(o, p):
        a(f"""buffer_store_dwordx4 {vr(o,4)}, v{vL16}, {WSR}, s{sQA+2*p} offen sc1
buffer_store_dwordx4 {vr(o+4,4)}, v{vL16}, {WSR}, s{sQA+2*p+1} offen sc1""")
    for p in range(3):
        ac = ACC[p]; o = OB + 8 * p
        a(f"""s_cmp_lt_u32 s{sP0}, {16 - p}
s_cselect_b64 vcc, -1, 0
v_cndmask_b32 v{t2}, v{vRs}, v{vK}, vcc""")
        if cfg.qpk:
            for r in range(0, 16, 2): a(f"v_pk_mul_f32 {P(ac+r)}, {P(ac+r)}, {P(t2)} op_sel_hi:[1,0]")
        else:
            for r in range(16): a(f"v_mul_f32 v{ac+r}, v{ac+r}, v{t2}")
        for r in range(8): a(f"v_cvt_pk_bf16_f32 v{o+r}, v{ac+2*r}, v{ac+2*r+1}")
        if p == 2:
            Lk = a.label("p1k")
            a(f"s_cmp_lt_u32 s{sP0}, 30\ns_cbranch_scc1 {Lk}")
            vwrite(o, 0); vread(o, 0); a("s_waitcnt lgkmcnt(0)")
            a(f"{Lk}:")
        vstore(o, p)
    a(f"s_branch {Lq}\n{Lv}:")
    for p in range(3):
        ac = ACC[p]; o = OB + 8 * p
        for r in range(16): a(f"v_mul_f32 v{ac+r}, v{ac+r}, v{vRS}")
        for r in range(8): a(f"v_cvt_pk_bf16_f32 v{o+r}, v{ac+2*r}, v{ac+2*r+1}")
        if p:
            a("s_waitcnt lgkmcnt(0)"); vstore(OB + 8*(p-1), p - 1)
        vwrite(o, 2048 * p); vread(o, 2048 * p)
    a("s_waitcnt lgkmcnt(0)"); vstore(OB + 16, 2)
    a(f"{Lq}:")
    stamp(a, cfg, 'qst')
    sPub = T + 17
    a(f"s_mov_b32 s{sPub}, 0")
    def pub(block):
        def f():
            L = a.label("pc")
            if block: a(f"s_cmp_eq_u32 s{sPub}, 0\ns_cbranch_scc0 {L}\ns_waitcnt vmcnt(0)")
            else: a(f"s_getreg_b32 s{T}, hwreg(HW_REG_IB_STS, 0, 4)\ns_or_b32 s{T}, s{T}, s{sPub}\ns_cmp_eq_u32 s{T}, 0\ns_cbranch_scc0 {L}")
            stamp(a, cfg, 'qdone')
            flag_store(a, t0, t1, sQF)
            a(f"s_mov_b32 s{sPub}, 1\n{L}:")
        return f
    hk = {g: pub(False) for g in cfg.pubchk}; hk[cfg.pubg] = pub(True)
    gemm(False, {0: {8, 20}, 1: {8, 12, 20}, 3: {12, 20}}[cfg.w1mode], hk)
    stamp(a, cfg, 'preBend')
    Lh = a.label("afw")
    a(f"""v_mov_b32 v{t0}, {LCN}
{Lh}:
ds_read_b32 v{t1}, v{t0}""")
    for p in range(3): a(f"ds_read_b128 {vr(FB+4*p,4)}, v{vAa} offset:{1536 + 512*p}")
    a(f"""s_waitcnt lgkmcnt(0)
v_readfirstlane_b32 s{T}, v{t1}
s_cmp_eq_u32 s{T}, 3
s_cbranch_scc0 {Lh}""")
    stamp(a, cfg, 'B_end')
    for p in range(3): a(f"v_mfma_f32_32x32x16_bf16 {vr(ACC[p],16)}, {vr(FB+4*p,4)}, {vr(BF,4)}, {vr(ACC[p],16)}")
    C1 = -2.0 * 0.7978845608028654 * LOG2E
    a(f"""v_mul_f32 v{vK}, {f2u(C1):#x}, v{vRs}
v_mul_f32 v{t0}, v{vRs}, v{vRs}
v_mul_f32 v{vK+1}, {f2u(0.044715):#x}, v{vK}
v_mul_f32 v{vK+1}, v{vK+1}, v{t0}
s_mov_b32 s{sHFL}, s{sHF}
s_nop 5""")
    for p in range(3):
        if p == 2: a(f"s_cmp_ge_u32 s{sP0}, 33\ns_cbranch_scc1 {Lp2c}")
        ac = ACC[p]; w = FB + 12; kc = P(vK); rs = P(vRS)
        for r in range(0, 16, 2): a(f"v_pk_mul_f32 {P(w+r)}, {P(ac+r)}, {P(ac+r)}")
        for r in range(0, 16, 2): a(f"v_pk_fma_f32 {P(w+r)}, {P(w+r)}, {kc}, {kc} op_sel:[0,1,0] op_sel_hi:[1,1,0]")
        for r in range(0, 16, 2): a(f"v_pk_mul_f32 {P(w+r)}, {P(w+r)}, {P(ac+r)}")
        for r in range(16): a(f"v_exp_f32 v{w+r}, v{w+r}")
        for r in range(0, 16, 2): a(f"v_pk_fma_f32 {P(w+r)}, {P(w+r)}, {rs}, {rs} op_sel:[0,1,1] op_sel_hi:[1,1,1]")
        for r in range(16): a(f"v_rcp_f32 v{w+r}, v{w+r}")
        for r in range(0, 16, 2): a(f"v_pk_mul_f32 {P(ac+r)}, {P(ac+r)}, {P(w+r)}")
        for r in range(8): a(f"v_cvt_pk_bf16_f32 v{ac+r}, v{ac+2*r}, v{ac+2*r+1}")
        if p == 2: a(f"s_add_u32 s{sHA}, s{sHA}, 4096")
        off = 2048 * p if p < 2 else 0
        a(f"buffer_store_dwordx4 {vr(ac,4)}, v{vL16}, {WSR}, s{sHA} offen offset:{off} sc1")
        a(f"buffer_store_dwordx4 {vr(ac+4,4)}, v{vL16}, {WSR}, s{sHA} offen offset:{off+1024} sc1")
    a(f"s_branch {Lp2c}")
    return max(R.hi, hi1)

CMB = 17 * 8192
class PollStage:
    def __init__(self, a, cfg): self.a = a; self.cfg = cfg
    def loads(self):
        a = self.a
        a(f"""buffer_load_dword v10, v8, {WSR}, s{T+17} offen sc1
buffer_load_dword v11, v8, {WSR}, s{T+18} offen sc1
buffer_load_dword v12, v9, {WSR}, s{T+19} offen sc1""")
    def check(self):
        self.a(f"""s_waitcnt vmcnt(0)
v_and_b32 v10, v10, v11
v_and_b32 v10, v10, v12
v_cmp_eq_u32 vcc, 1, v10
s_cmp_eq_u64 vcc, exec""")
    def stage(self):
        a = self.a
        a(f"""s_lshl_b32 s{T}, s{sHEAD}, 6
s_lshl_b32 s{T+1}, s{sQB}, 3
s_add_u32 s{T}, s{T}, s{T+1}
s_lshl_b32 s{T+1}, s{sQP}, 1
s_add_u32 s{T}, s{T}, s{T+1}
s_lshl_b32 s{T}, s{T}, 10
s_lshl_b32 s{T+1}, s{sQP}, 11
s_add_u32 m0, s{T+1}, {QST}
s_lshl_b32 s{T+2}, s{sQP}, 10
buffer_load_dwordx4 v6, {WSR}, s{T} offen sc1 lds
buffer_load_dwordx4 v6, {WSR}, s{T} offen offset:1024 sc1 lds
s_lshl_b32 s{T+3}, s{sHEAD}, 17
s_add_u32 s{T+3}, s{T+3}, s{T+2}
s_add_u32 s{T+3}, s{T+3}, {WS_KV}""")
        for i in range(5):
            for h in range(2):
                a(f"s_add_u32 m0, s{T+2}, {h*65536 + i*4096}\ns_add_u32 s{T}, s{T+3}, {h*65536 + i*4096}")
                a(f"buffer_load_dwordx4 v6, {WSR}, s{T} offen sc1 lds")
    def emit(self, what):
        a = self.a
        if what == "ids":
            a(f"""s_and_b32 s{T}, s{sWG}, 7
s_lshl_b32 s{T}, s{T}, 2
s_bfe_u32 s{T+1}, s{sWG}, 0x20003
s_add_u32 s{sHEAD}, s{T}, s{T+1}
s_lshr_b32 s{sQB}, s{sWG}, 5
s_and_b32 s{sQP}, s{sWAVE}, 3
s_lshr_b32 s{sKH}, s{sWAVE}, 2
v_lshlrev_b32 v6, 4, v{vL}
v_lshlrev_b32 v8, 2, v{vL}
v_and_b32 v9, 28, v8""")
            for ty, dst in ((1, T + 17), (2, T + 18), (0, T + 19)):
                a(f"""s_lshr_b32 s{T}, s{sHEAD}, 1
s_add_u32 s{T}, s{T}, {16*ty}
s_mul_i32 s{T}, s{T}, 86
s_and_b32 s{T}, s{T}, 0xff00
s_add_u32 s{dst}, s{T}, {FQ}""")
            a(f"s_lshl_b32 s{T}, s{sQB}, 5\ns_add_u32 s{T+19}, s{T+19}, s{T}")
        else:
            L = a.label("fin")
            a(f"v_mov_b32 v7, {LCN + 4}\ns_cmp_eq_u32 s{sWAVE}, 7\ns_cbranch_scc0 {L}_l\n{L}:")
            self.loads(); self.check()
            a(f"""s_cbranch_scc1 {L}_ok
s_sleep {self.cfg.qsl}
s_branch {L}
{L}_ok:
ds_write_b32 v7, v10
s_branch {L}_go
{L}_l:
ds_read_b32 v10, v7
s_waitcnt lgkmcnt(0)
v_readfirstlane_b32 s{T}, v10
s_cmp_eq_u32 s{T}, 0
s_cbranch_scc0 {L}_go
s_sleep 1
s_branch {L}_l
{L}_go:""")
            stamp(a, self.cfg, 'seen')
            self.stage()
            stamp(a, self.cfg, 'p2in')

def phase23(a, cfg, Lp2h, Lp2c, PS):
    R = Regs(2)
    t0, t1, t2, t3, vL16, vIdx, vAK, vAV, vW3g, vOut, vPoll, vPa = [R.alloc() for _ in range(12)]
    vWa = R.alloc(); vWa2 = R.alloc(); vRd = [R.alloc() for _ in range(4)]; vPo = R.alloc(); vDum = R.alloc(); vWm = R.alloc()
    vXr = R.alloc(4, 4); vBr = R.alloc(4, 4); XB = R.alloc(8, 4)
    NH = 13
    HF = R.alloc(4 * NH, 4)
    FW0 = R.alloc(8, 4)
    ACC = R.alloc(32, 4)
    vQ = [R.alloc(4, 4) for _ in range(2)]
    vK = [R.alloc(4, 4) for _ in range(2)]
    vV = [R.alloc(8, 4) for _ in range(2)]
    vS = [R.alloc(16, 4) for _ in range(2)]
    vO = [R.alloc(16, 4) for _ in range(2)]
    FWb = [FW0, vQ[0], vK[0]]
    OF = vO[0]
    sEx, sKVg, sKVl = T + 10, T + 12, T + 13
    sOF, sOA, sOL, sOP, sWoA, sGot, sHP = T + 14, T + 15, T + 16, T + 17, T + 18, T + 19, T + 9
    sRT3, sCT = sHEAD, sQB
    W2R = f"s[{sW2}:{sW2+3}]"; WOR = f"s[{sWO}:{sWO+3}]"
    a(f"{Lp2h}:")
    PS.emit("finish")
    Lcom = a.label("p2com")
    a(f"s_mov_b32 s{sHFL}, 0\ns_branch {Lcom}\n{Lp2c}:")
    stamp(a, cfg, 'p2in')
    a(f"""s_and_b32 s{T}, s{sWG}, 7
s_lshl_b32 s{T}, s{T}, 2
s_bfe_u32 s{T+1}, s{sWG}, 0x20003
s_add_u32 s{sHEAD}, s{T}, s{T+1}
s_lshr_b32 s{sQB}, s{sWG}, 5
s_and_b32 s{sQP}, s{sWAVE}, 3
s_lshr_b32 s{sKH}, s{sWAVE}, 2
v_lshlrev_b32 v{vL16}, 4, v{vL}
{Lcom}:
s_lshl_b32 s{T}, s{sKH}, 16
v_and_b32 v{t0}, 27, v{vL}
v_mov_b32 v{t1}, 0x3f803f80
v_cmp_eq_u32 vcc, 16, v{t0}
v_add_u32 v{vAK}, s{T}, v{vL16}
v_lshrrev_b32 v{t2}, 5, v{vL}
v_cndmask_b32 v{t0}, 0, v{t1}, vcc
v_lshlrev_b32 v{t2}, 8, v{t2}
v_and_b32 v{t1}, 15, v{vL}
v_lshlrev_b32 v{t1}, 4, v{t1}
v_add3_u32 v{vAV}, v{t2}, v{t1}, s{T}
s_mov_b32 s{sEx}, 0x0000ffff
s_mov_b32 s{sEx+1}, 0x0000ffff
s_lshl_b32 s{T+1}, s{sQP}, 11
s_add_u32 s{T+1}, s{T+1}, {QST}
v_add_u32 v{t2}, s{T+1}, v{vL16}""")
    for r in range(8): a(f"v_mov_b32 v{vV[0]+r}, v{t0}")
    LA = a.label("barA")
    a(f"s_cmp_lt_u32 s{sWAVE}, 4\ns_cbranch_scc1 {LA}\ns_waitcnt vmcnt(0)\n{LA}:\ns_waitcnt lgkmcnt(0)\ns_barrier")
    stamp(a, cfg, 'att0')

    vmq = []
    def vm(tag, cond=False): vmq.append((tag, cond))
    def vmwait(tags):
        idx = max(i for i, (t, c) in enumerate(vmq) if t in tags)
        n = sum(1 for t, c in vmq[idx+1:] if not c)
        assert n < 64
        return f"s_waitcnt vmcnt({n})"
    slot_of = {}
    def w2dma(j, slot):
        def f():
            slot_of[j] = slot; vm(f"w{j}")
            a(f"s_add_u32 m0, s{sM3}, {slot*8192}\ns_add_u32 s{T}, s{sW3}, {j*16384}")
            a(f"buffer_load_dwordx4 v{vW3g}, {W2R}, s{T} offen lds")
        return f
    def wodma(i, slot):
        def f():
            slot_of[100 + i] = slot; vm(f"o{i}")
            a(f"s_add_u32 m0, s{sM3}, {slot*8192}\ns_add_u32 s{T}, s{sWoA}, {i*16384}")
            a(f"buffer_load_dwordx4 v{vW3g}, {WOR}, s{T} offen lds")
        return f
    def kvdma(i):
        def f():
            vm(f"kv{i}")
            a(f"s_add_u32 m0, s{sKVl}, {i*4096}\ns_add_u32 s{T}, s{sKVg}, {i*4096}")
            a(f"buffer_load_dwordx4 v{vL16}, {WSR}, s{T} offen sc1 lds")
        return f
    def hload(j):
        def f():
            L = None
            if j >= 20:
                L = a.label("hs"); a(f"s_cmp_eq_u32 s{sKQ}, 3\ns_cbranch_scc1 {L}")
            vm(f"h{j}", j >= 20)
            a(f"s_add_u32 s{T}, s{sH3}, {j*1024}")
            a(f"buffer_load_dwordx4 {vr(HF+4*(j % NH),4)}, v{vL16}, {WSR}, s{T} offen sc1")
            if L: a(f"{L}:")
        return f
    def txt(t): return lambda: a(t)
    base = [0]
    def rdW(b, slot):
        off = slot * 8192 - base[0]
        if off < 0 or off + 1024 > 65535:
            nb = (slot // 8) * 65536
            d = nb - base[0]
            a(f"v_add_u32 v{vWa}, {d & 0xffffffff:#x}, v{vWa}\nv_add_u32 v{vWa2}, {d & 0xffffffff:#x}, v{vWa2}")
            base[0] = nb; off = slot * 8192 - nb
        a(f"ds_read_b64_tr_b16 {vr(FWb[b],2)}, v{vWa} offset:{off}")
        a(f"ds_read_b64_tr_b16 {vr(FWb[b]+2,2)}, v{vWa} offset:{off+1024}")
        a(f"ds_read_b64_tr_b16 {vr(FWb[b]+4,2)}, v{vWa2} offset:{off}")
        a(f"ds_read_b64_tr_b16 {vr(FWb[b]+6,2)}, v{vWa2} offset:{off+1024}")
    first = [True, True]
    def mm1(b, frag, p):
        c = "0" if first[p] else vr(ACC+16*p, 16)
        first[p] = False
        a(f"v_mfma_f32_32x32x16_bf16 {vr(ACC+16*p,16)}, {vr(FWb[b]+4*p,4)}, {vr(frag,4)}, {c}")
    def run(steps, pre=True, vmo=False, hooks={}):
        n = len(steps)
        if pre:
            rdW(0, steps[0][0])
            if n > 1: rdW(1, steps[1][0])
        for i in range(n):
            if i in hooks: hooks[i]()
            if i + 2 < n: rdW((i + 2) % 3, steps[i + 2][0])
            a(f"s_waitcnt {f'vmcnt({n-1-i}) ' if vmo else ''}lgkmcnt({4 * min(2, n - 1 - i)})")
            mm1(i % 3, steps[i][1], 0); mm1(i % 3, steps[i][1], 1)
    def hs(js): return [(slot_of[j], HF + 4*(j % NH)) for j in js]

    ch = {}
    def put(kt, ph, f): ch.setdefault((kt, ph), []).append(f)
    def seq(kt, fs, per=1, ph=0):
        p = 2 * kt + ph
        for i, f in enumerate(fs): put((p + i // per) // 2, (p + i // per) & 1, f)
    def srdt(d, lo, size): return txt(f"s_mov_b32 s{d}, s{lo}\ns_mov_b32 s{d+1}, s{lo+1}\ns_mov_b32 s{d+2}, {size:#x}\ns_mov_b32 s{d+3}, 0x20000")
    put(0, 0, txt(f"""s_lshl_b32 s{T}, s{sKH}, 16
s_lshl_b32 s{sKVl}, s{sQP}, 10
s_add_u32 s{sKVl}, s{sKVl}, s{T}
s_lshl_b32 s{sKVg}, s{sHEAD}, 17
s_add_u32 s{sKVg}, s{sKVg}, s{sKVl}
s_add_u32 s{sKVg}, s{sKVg}, {WS_KV}"""))
    seq(0, [kvdma(i) for i in range(5, 9)], ph=1)
    seq(1, [srdt(sW2, sARG + 12, 1376 * 1024), srdt(sX, sARG, 2048 * 1024), srdt(sB2, sARG + 14, 1024), srdt(sWO, sARG + 4, 512 * 1024), srdt(sOUT, sARG + 16, 2048 * 1024)])
    put(3, 0, txt(f"""s_lshr_b32 s{sKQ}, s{sWAVE}, 1
s_and_b32 s{T+4}, s{sWAVE}, 1
s_lshl_b32 s{T+2}, s{sRT3}, 1
s_add_u32 s{T+2}, s{T+2}, s{T+4}
s_mul_i32 s{T+1}, s{sKQ}, 22
s_mul_i32 s{sH3}, s{T+2}, {NKS}
s_lshl_b32 s{sOL}, s{sKQ}, 3
s_add_u32 s{sOL}, s{sOL}, s{sH3}
s_lshl_b32 s{sOL}, s{sOL}, 10
s_add_u32 s{sOL}, s{sOL}, {WS_AH}
s_add_u32 s{sH3}, s{sH3}, s{T+1}
s_add_u32 s{sH3}, s{sH3}, 32
s_lshl_b32 s{sH3}, s{sH3}, 10
s_add_u32 s{sH3}, s{sH3}, {WS_AH}
s_lshl_b32 s{sW3}, s{T+1}, 14
s_lshl_b32 s{T+3}, s{T+4}, 13
s_lshl_b32 s{sWo3}, s{sCT}, 7
s_add_u32 s{sWo3}, s{sWo3}, s{T+3}
s_add_u32 s{sW3}, s{sW3}, s{sWo3}
s_lshl_b32 s{sM3}, s{sWAVE}, 10
s_lshl_b32 s{sWoA}, s{sKQ}, 17
s_add_u32 s{sWoA}, s{sWoA}, s{sWo3}
s_lshl_b32 s{sHP}, s{T+2}, 6
s_add_u32 s{sHP}, s{sHP}, {FH}
s_lshl_b32 s{sOP}, s{sRT3}, 8
s_lshl_b32 s{T}, s{sKQ}, 5
s_add_u32 s{sOP}, s{sOP}, {FO}
s_lshl_b32 s{T+5}, s{T+2}, 15
s_lshl_b32 s{T+4}, s{sCT}, 7
s_add_u32 s{T+4}, s{T+4}, s{T}"""))
    put(3, 1, txt(f"""v_lshrrev_b32 v{t0}, 3, v{vL}
v_and_b32 v{t1}, 7, v{vL}
v_bfe_u32 v{t3}, v{vL}, 4, 1
v_lshlrev_b32 v{t3}, 2, v{t3}
v_xor_b32 v{t1}, v{t1}, v{t3}
v_lshlrev_b32 v{t1}, 4, v{t1}
v_lshl_add_u32 v{vW3g}, v{t0}, 10, v{t1}"""))
    def hflag():
        L = a.label("hf")
        a(f"s_cmp_eq_u32 s{sHFL}, 0\ns_cbranch_scc1 {L}\ns_waitcnt vmcnt(4)")
        flag_store(a, t0, t1, sHFL); vm("hflag", True)
        a(f"{L}:")
    put(4, 0, hflag)
    put(4, 1, w2dma(0, 16))
    def xb():
        a(f"""v_and_b32 v{t0}, 31, v{vL}
v_lshrrev_b32 v{t1}, 5, v{vL}
v_lshl_add_u32 v{t1}, v{t1}, 4, s{T+4}
v_lshl_add_u32 v{vOut}, v{t0}, 10, v{t1}
v_add_u32 v{vOut}, s{T+5}, v{vOut}
buffer_load_dwordx4 {vr(vBr,4)}, v{t1}, s[{sB2}:{sB2+3}], 0 offen
buffer_load_dwordx4 {vr(vXr,4)}, v{vOut}, s[{sX}:{sX+3}], 0 offen"""); vm("b2"); vm("x")
    put(5, 0, xb)
    put(6, 0, txt(f"""v_lshrrev_b32 v{t0}, 5, v{vL}
v_bfe_u32 v{t1}, v{vL}, 2, 2
v_lshl_add_u32 v{t0}, v{t0}, 2, v{t1}
v_lshlrev_b32 v{t0}, 7, v{t0}
v_bfe_u32 v{t1}, v{vL}, 3, 1
v_bfe_u32 v{t2}, v{vL}, 4, 1
v_lshl_add_u32 v{t1}, v{t1}, 1, v{t2}"""))
    put(6, 1, txt(f"""v_xor_b32 v{t1}, s{sKQ}, v{t1}
v_and_b32 v{t2}, 3, v{vL}
v_lshlrev_b32 v{t2}, 3, v{t2}
v_lshl_add_u32 v{t1}, v{t1}, 5, v{t2}
s_lshl_b32 s{T+4}, s{sKQ}, 11
v_add3_u32 v{vWa}, v{t0}, v{t1}, s{T+4}
v_xor_b32 v{vWa2}, 64, v{vWa}
v_and_b32 v{vPa}, 15, v{vL}
v_lshlrev_b32 v{vPa}, 2, v{vPa}
v_lshlrev_b32 v{vPo}, 2, v{vL}"""))
    seq(8, [kvdma(i) for i in range(9, 13)])
    def hpoll(): vm("hp"); a(f"buffer_load_dword v{vPoll}, v{vPa}, {WSR}, s{sHP} offen sc1")
    put(cfg.hpk, 0, hpoll)
    seq(10, [w2dma(j, sl) for j, sl in zip(range(1, 5), (0, 1, 8, 9))])
    def hcheck():
        Lh = a.label("pollh")
        a(f"""{vmwait(['hp'])}
{Lh}:
v_cmp_eq_u32 vcc, 1, v{vPoll}
s_cmp_eq_u64 vcc, exec
s_cbranch_scc1 {Lh}_ok
s_sleep 2
buffer_load_dword v{vPoll}, v{vPa}, {WSR}, s{sHP} offen sc1
s_waitcnt vmcnt(0)
s_branch {Lh}
{Lh}_ok:""")
    put(cfg.hpk + 2, 0, hcheck)
    seq(cfg.hpk + 2, [hload(j) for j in range(0, 5)], ph=1)
    def xbfin(r0):
        def f():
            if r0 == 0:
                a(vmwait(['x']))
                for v in (vXr, vBr): a(f"v_permlane32_swap_b32 v{v}, v{v+2}\nv_permlane32_swap_b32 v{v+1}, v{v+3}")
            for r in (r0, r0 + 1):
                a(f"""v_lshlrev_b32 v{XB+2*r}, 16, v{vXr+r}
v_and_b32 v{XB+2*r+1}, 0xffff0000, v{vXr+r}
v_lshlrev_b32 v{t0}, 16, v{vBr+r}
v_and_b32 v{t1}, 0xffff0000, v{vBr+r}
v_add_f32 v{XB+2*r}, v{XB+2*r}, v{t0}
v_add_f32 v{XB+2*r+1}, v{XB+2*r+1}, v{t1}""")
        return f
    put(12, 0, xbfin(0)); put(13, 0, xbfin(2))
    REDB = lambda d: None
    put(14, 0, txt(f"""s_mul_i32 s{T}, s{sWAVE}, 3072
s_add_u32 s{T}, s{T}, {CMB}
v_add_u32 v{vXr}, s{T}, v{vL16}
s_xor_b32 s{T}, s{sWAVE}, 4
s_mul_i32 s{T}, s{T}, 3072
s_add_u32 s{T}, s{T}, {CMB}
v_add_u32 v{vXr+1}, s{T}, v{vL16}
s_lshl_b32 s{sOF}, s{sQB}, 3
s_lshl_b32 s{T+1}, s{sQP}, 1
s_add_u32 s{sOF}, s{sOF}, s{T+1}
s_add_u32 s{sOF}, s{sOF}, s{sKH}
s_mul_i32 s{sOA}, s{sOF}, {NKS}
s_add_u32 s{sOA}, s{sOA}, s{sHEAD}
s_lshl_b32 s{sOA}, s{sOA}, 10
s_add_u32 s{sOA}, s{sOA}, {WS_AH}
s_lshl_b32 s{sOF}, s{sOF}, 5
s_add_u32 s{sOF}, s{sOF}, s{sHEAD}
s_lshl_b32 s{sOF}, s{sOF}, 2
s_add_u32 s{sOF}, s{sOF}, {FO}"""))
    for o in range(4):
        put(15 + (o >> 1) * 6, o & 1, txt(f"""s_xor_b32 s{T}, s{sWAVE}, {2*o}
s_and_b32 s{T+1}, s{T}, 1
s_mul_i32 s{T+1}, s{T+1}, 6144
s_and_b32 s{T+2}, s{T}, 2
s_and_b32 s{T}, s{T}, 4
s_lshl_b32 s{T}, s{T}, 1
s_add_u32 s{T}, s{T}, s{T+2}
s_lshl_b32 s{T}, s{T}, 13
s_add_u32 s{T}, s{T}, s{T+1}
s_add_u32 s{T}, s{T}, {max(o-1,0)*2048}
v_add_u32 v{vRd[o]}, s{T}, v{vL16}"""))
    seq(16, [kvdma(i) for i in range(13, 16)])
    seq(17, [w2dma(j, sl) for j, sl in zip(range(5, 9), (2, 3, 10, 11))], ph=1)
    seq(19, [hload(j) for j in range(5, 13)], ph=1)
    sWm = T + 20
    def warm_setup():
        a(f"""v_and_b32 v{vDum}, 7, v{vL}
v_lshlrev_b32 v{vDum}, 10, v{vDum}
v_lshrrev_b32 v{t1}, 3, v{vL}
v_lshl_add_u32 v{vWm}, v{t1}, 14, v{vDum}
s_and_b32 s{T}, s{sRT3}, 3
s_lshl_b32 s{T}, s{T}, 1
s_lshl_b32 s{sWm}, 0x03030303, s{T}
s_mov_b32 s{sWm+1}, s{sWm}""")
    def warm(srd_, sbase, off):
        def f():
            a(f"""s_add_u32 s{T}, s{sbase}, {off}
s_mov_b64 exec, s[{sWm}:{sWm+1}]
buffer_load_dword v{vDum}, v{vWm}, {srd_}, s{T} offen
s_mov_b64 exec, -1"""); vm("warm")
        return f
    put(7, 0, warm_setup)
    if cfg.w2pf:
        put(cfg.w2pf, 1, warm(W2R, sW3, 6 * 16384)); put(cfg.w2pf + 1, 1, warm(W2R, sW3, 14 * 16384))
    if cfg.wopf: put(cfg.wopf, 0, warm(WOR, sWoA, 0))
    seq(24, [w2dma(j, sl) for j, sl in zip(range(9, 18), (4, 5, 12, 13, 16, 0, 1, 8, 9))], per=2)
    seq(26, [hload(j) for j in range(13, 18)], per=2, ph=1)
    seq(28, [w2dma(j, sl) for j, sl in zip(range(18, 22), (2, 3, 10, 11))] + [wodma(0, 14), wodma(1, 6)], per=2)
    seq(29, [hload(j) for j in range(18, 22)], ph=1)
    ffn = {16 + i: i for i in range(5)}; ffn.update({24 + i: 5 + i for i in range(8)})
    bars = {8: ["kv8", "w0"], 16: ["kv12", "w4"], 24: ["kv15", "w8"], 28: ["w17"]}
    lowp = {b - cfg.plow for b in bars} | {32 - cfg.plow}

    kb = [0]
    def koff(t):
        return t * 2048
    def rdK(b, t): a(f"ds_read_b128 {vr(vK[b],4)}, v{vAK} offset:{min(t, 31)*2048}")
    def rdV(b, t):
        t = min(t, 31)
        a(f"s_mov_b64 exec, s[{sEx}:{sEx+1}]")
        a(f"ds_read_b128 {vr(vV[b],4)}, v{vAV} offset:{t*2048+1024}")
        a(f"ds_read_b128 {vr(vV[b]+4,4)}, v{vAV} offset:{t*2048+1024+512}")
        a(f"s_mov_b64 exec, -1")
    def QK(sb, kb, j): a(f"v_mfma_f32_32x32x16_bf16 {vr(vS[sb],16)}, {vr(vK[kb],4)}, {vr(vQ[j],4)}, 0")
    def PV(j, vb, half, sb): a(f"v_smfmac_f32_32x32x32_bf16 {vr(vO[j],16)}, {vr(vV[vb]+4*half,4)}, {vr(vS[sb]+8*half,8)}, v{vIdx}")
    def E(sb, lo, hi):
        for r in range(lo, hi): a(f"v_exp_f32 v{vS[sb]+r}, v{vS[sb]+r}")
    a(f"ds_read_b128 {vr(vQ[0],4)}, v{t2}")
    rdK(0, 0)
    a(f"ds_read_b128 {vr(vQ[1],4)}, v{t2} offset:1024")
    rdV(0, 0); rdK(1, 1)
    a(f"s_setprio 3\nv_mov_b32 v{vIdx}, 0xdddddddd")
    for r in range(8): a(f"v_mov_b32 v{vV[1]+r}, v{t0}")
    a("s_waitcnt lgkmcnt(4)")
    QK(0, 0, 0)
    for j in range(2):
        for r in range(16): a(f"v_mov_b32 v{vO[j]+r}, 0")
    a("s_waitcnt lgkmcnt(0)\n.p2align 3")
    for kt in range(32):
        c = kt & 1; p = c ^ 1
        if kt in bars:
            a(vmwait(bars[kt])); stamp(a, cfg, f'pre{kt}'); a("s_barrier\ns_setprio 3"); stamp(a, cfg, f'post{kt}')
        if kt in lowp: a("s_setprio 2")
        fj = ffn.get(kt)
        E(0, 0, 2)
        if kt: PV(1, p, 1, 1)
        E(0, 2, 4)
        QK(1, c, 1)
        if kt < 31: rdV(p, kt + 1)
        if fj is not None: rdW(0, slot_of[fj])
        E(0, 4, 7)
        for f in ch.pop((kt, 0), []): f()
        E(0, 7, 10)
        PV(0, c, 0, 0); E(0, 10, 16)
        E(1, 0, 2); PV(0, c, 1, 0); E(1, 2, 4)
        a("s_waitcnt lgkmcnt(0)")
        if kt < 31: QK(0, p, 0)
        if kt < 30: rdK(c, kt + 2)
        E(1, 4, 7)
        if fj is not None:
            a(vmwait([f"h{fj}"])); mm1(0, HF + 4 * (fj % NH), 0)
        for f in ch.pop((kt, 1), []): f()
        E(1, 7, 10); PV(1, c, 0, 1); E(1, 10, 13)
        if fj is not None: mm1(0, HF + 4 * (fj % NH), 1)
        E(1, 13, 16)
    assert not ch, ch.keys()
    a(f"s_setprio 0\ns_cmp_eq_u32 s{sKH}, 0")
    PV(1, 1, 1, 1)
    a(f"s_cselect_b64 vcc, -1, 0\ns_nop 10")
    stamp(a, cfg, 'att1')
    snd = vS[0]; kp = vS[1]
    for r in range(9): a(f"v_cndmask_b32 v{snd+r}, v{vO[0]+r}, v{vO[1]+r}, vcc")
    for q in range(3): a(f"ds_write_b128 v{vXr}, {vr(snd+4*q,4)} offset:{q*1024}")
    for r in range(9): a(f"v_cndmask_b32 v{kp+r}, v{vO[1]+r}, v{vO[0]+r}, vcc")
    a("s_waitcnt vmcnt(0) lgkmcnt(0)"); stamp(a, cfg, 'precmb'); a("s_barrier"); stamp(a, cfg, 'cmb')
    for q in range(3): a(f"ds_read_b128 {vr(snd+4*q,4)}, v{vXr+1} offset:{q*1024}")
    st1 = hs([14, 15, 18, 19, 16, 17, 13])
    rdW(0, st1[0][0]); rdW(1, st1[1][0])
    a(f"""s_waitcnt lgkmcnt(8)
v_add_f32 v{kp+8}, v{kp+8}, v{snd+8}
v_rcp_f32 v{t0}, v{kp+8}""")
    for r in range(8): a(f"v_add_f32 v{kp+r}, v{kp+r}, v{snd+r}")
    for r in range(8): a(f"v_mul_f32 v{kp+r}, v{kp+r}, v{t0}")
    for r in range(4): a(f"v_cvt_pk_bf16_f32 v{snd+r}, v{kp+2*r}, v{kp+2*r+1}")
    a(f"buffer_store_dwordx4 {vr(snd,4)}, v{vL16}, {WSR}, s{sOA} offen sc1")
    stamp(a, cfg, 'ost')
    for i, sl in zip(range(2, 8), (7, 4, 5, 15, 12, 13)): wodma(i, sl)()
    Lslow = a.label("slow"); Lback = a.label("back")
    a(f"""v_subrev_u32 v{t1}, 0x21800000, v{kp+8}
v_mul_f32 v{t0}, 0, v{kp}
s_mov_b32 s{T}, 0x3c000000
v_cmp_gt_u32 s[{T+2}:{T+3}], s{T}, v{t1}""")
    for r in range(1, 8): a(f"v_fmac_f32 v{t0}, 0, v{kp+r}")
    a(f"""v_cmp_eq_f32 vcc, 0, v{t0}
s_and_b64 vcc, vcc, s[{T+2}:{T+3}]
s_cmp_eq_u64 vcc, exec
s_cbranch_scc0 {Lslow}
{Lback}:""")
    def slow():
        sQ, sK_ = vO[1], vO[1] + 4
        S = vS[0]; O = vO[0]; V = vV[0]; m = t2; va = t3
        L1 = a.label("s1"); L2 = a.label("s2")
        a(f"""{Lslow}:
s_waitcnt vmcnt(0)
s_lshl_b32 s{T}, s{sHEAD}, 6
s_lshl_b32 s{T+1}, s{sQB}, 3
s_add_u32 s{T}, s{T}, s{T+1}
s_lshl_b32 s{T+1}, s{sQP}, 1
s_add_u32 s{T}, s{T}, s{T+1}
s_add_u32 s{T}, s{T}, s{sKH}
s_lshl_b32 s{T}, s{T}, 10
buffer_load_dwordx4 {vr(sQ,4)}, v{vL16}, {WSR}, s{T} offen sc1
s_lshl_b32 s{T+1}, s{sHEAD}, 17
s_add_u32 s{T+1}, s{T+1}, {WS_KV}
s_lshl_b32 s{T}, s{sKH}, 16
v_subrev_u32 v{va}, s{T}, v{vAV}
v_mov_b32 v{m}, 0xff800000
s_mov_b32 s{T}, s{T+1}
s_mov_b32 s{T+2}, 64
{L1}:
buffer_load_dwordx4 {vr(sK_,4)}, v{vL16}, {WSR}, s{T} offen sc1
s_waitcnt vmcnt(0)
v_mfma_f32_32x32x16_bf16 {vr(S,16)}, {vr(sK_,4)}, {vr(sQ,4)}, 0
s_add_u32 s{T}, s{T}, 2048
s_sub_u32 s{T+2}, s{T+2}, 1
s_nop 15""")
        for r in range(0, 16, 2): a(f"v_max3_f32 v{m}, v{m}, v{S+r}, v{S+r+1}")
        a(f"""s_cmp_lg_u32 s{T+2}, 0
s_cbranch_scc1 {L1}
v_mov_b32 v{t0}, v{m}
s_nop 1
v_permlane32_swap_b32 v{m}, v{t0}
s_mov_b32 s{T}, s{T+1}
s_mov_b32 s{T+2}, 64
v_max_f32 v{m}, v{m}, v{t0}""")
        for r in range(16): a(f"v_mov_b32 v{O+r}, 0")
        a(f"""{L2}:
buffer_load_dwordx4 {vr(sK_,4)}, v{vL16}, {WSR}, s{T} offen sc1
s_mov_b64 exec, s[{sEx}:{sEx+1}]
buffer_load_dwordx4 {vr(V,4)}, v{va}, {WSR}, s{T} offen offset:1024 sc1
buffer_load_dwordx4 {vr(V+4,4)}, v{va}, {WSR}, s{T} offen offset:1536 sc1
s_mov_b64 exec, -1
s_waitcnt vmcnt(0)
v_mfma_f32_32x32x16_bf16 {vr(S,16)}, {vr(sK_,4)}, {vr(sQ,4)}, 0
s_add_u32 s{T}, s{T}, 2048
s_sub_u32 s{T+2}, s{T+2}, 1
s_nop 15""")
        for r in range(16): a(f"v_sub_f32 v{S+r}, v{S+r}, v{m}")
        for r in range(16): a(f"v_exp_f32 v{S+r}, v{S+r}")
        a(f"""s_nop 1
v_smfmac_f32_32x32x32_bf16 {vr(O,16)}, {vr(V,4)}, {vr(S,8)}, v{vIdx}
v_smfmac_f32_32x32x32_bf16 {vr(O,16)}, {vr(V+4,4)}, {vr(S+8,8)}, v{vIdx}
s_cmp_lg_u32 s{T+2}, 0
s_cbranch_scc1 {L2}
s_nop 15
v_rcp_f32 v{t0}, v{O+8}
s_nop 0""")
        for r in range(8): a(f"v_mul_f32 v{O+r}, v{O+r}, v{t0}")
        for r in range(4): a(f"v_cvt_pk_bf16_f32 v{S+r}, v{O+2*r}, v{O+2*r+1}")
        a(f"""buffer_store_dwordx4 {vr(S,4)}, v{vL16}, {WSR}, s{sOA} offen sc1
s_waitcnt vmcnt(0)
s_branch {Lback}""")
    def poll(): a(f"buffer_load_dword v{vPoll}, v{vPo}, {WSR}, s{sOP} offen sc1")
    def oloads():
        for j in range(8):
            if j == 4: a(f"s_add_u32 s{sOL}, s{sOL}, 4096")
            a(f"buffer_load_dwordx4 {vr(OF+4*j,4)}, v{vL16}, {WSR}, s{sOL} offen offset:{(j%4)*1024} sc1")
    def opub():
        a("s_waitcnt vmcnt(6)")
        flag_store(a, t0, t1, sOF)
        stamp(a, cfg, 'opub')
    run(st1, pre=False, hooks={cfg.opubs: opub})
    Lsk = a.label("p3sk"); Lo = a.label("pollo")
    d = 65536 - base[0]
    a(f"v_add_u32 v{vWa}, {d & 0xffffffff:#x}, v{vWa}\nv_add_u32 v{vWa2}, {d & 0xffffffff:#x}, v{vWa2}"); base[0] = 65536
    a(f"s_cmp_eq_u32 s{sKQ}, 3\ns_cbranch_scc1 {Lsk}")
    run(hs([20, 21]))
    assert base[0] == 65536
    a(f"{Lsk}:"); stamp(a, cfg, 'ffn2')
    a(f"""s_cmp_eq_u32 s{sWAVE}, {cfg.opw}
s_cbranch_scc0 {Lo}_ok
{Lo}:""")
    poll()
    a(f"""s_waitcnt vmcnt(0)
v_cmp_eq_u32 vcc, 1, v{vPoll}
s_cmp_eq_u64 vcc, exec
s_cbranch_scc1 {Lo}_ok
s_sleep {cfg.osl}
s_branch {Lo}
{Lo}_ok:
s_waitcnt vmcnt(1)""")
    stamp(a, cfg, 'opoll')
    a("s_barrier"); stamp(a, cfg, 'B3')
    oloads()
    run([(slot_of[100 + i], OF + 4*i) for i in range(8)], vmo=True)
    a("s_nop 11"); stamp(a, cfg, 'wo')
    for o in range(1, 4):
        for q in range(2): a(f"ds_write_b128 v{vRd[o]}, {vr(ACC+8*o+4*q,4)} offset:{q*1024}")
    for r in range(8): a(f"v_add_f32 v{ACC+r}, v{ACC+r}, v{XB+r}")
    a("s_waitcnt lgkmcnt(0)\ns_barrier")
    RB = vS[0]
    for q in range(6): a(f"ds_read_b128 {vr(RB+4*q,4)}, v{vRd[0]} offset:{q*1024}")
    for o in range(3):
        a(f"s_waitcnt lgkmcnt({4-2*o})")
        for r in range(8): a(f"v_add_f32 v{ACC+r}, v{ACC+r}, v{RB+8*o+r}")
    for r in range(4): a(f"v_cvt_pk_bf16_f32 v{vXr+r}, v{ACC+2*r}, v{ACC+2*r+1}")
    a(f"s_nop 1\nv_permlane32_swap_b32 v{vXr}, v{vXr+2}\nv_permlane32_swap_b32 v{vXr+1}, v{vXr+3}")
    a(f"buffer_store_dwordx4 {vr(vXr,4)}, v{vOut}, s[{sOUT}:{sOUT+3}], 0 offen {cfg.outsc}"); stamp(a, cfg, 'fst')
    cfg.after_end = slow
    return R.hi

def build_fused(cfg):
    a = Asm()
    a(f"""s_cmp_ge_u32 s{sWG}, 256
s_cbranch_scc1 L_end
s_load_dwordx16 s[{sARG}:{sARG+15}], s[0:1], 0
s_load_dwordx4 s[{sARG+16}:{sARG+19}], s[0:1], 64
s_load_dwordx2 s[{sARG+20}:{sARG+21}], s[0:1], 80""")
    if cfg.ts:
        for i in range(16): a(f"s_mov_b32 s{sTS+i}, 0")
    stamp(a, cfg, 'start')
    a(f"""v_lshrrev_b32 v2, 6, v0
v_and_b32 v1, 63, v0
v_readfirstlane_b32 s{sWAVE}, v2""")
    PS = PollStage(a, cfg)
    h1 = phase1(a, cfg, "L_p2h", "L_p2c", PS.emit)
    h2 = phase23(a, cfg, "L_p2h", "L_p2c", PS)
    if cfg.ts:
        a("s_waitcnt vmcnt(0)")
        stamp(a, cfg, 'end')
        stamps_out(a, cfg, 8)
    a("L_end:\ns_endpgm")
    cfg.after_end()
    hi = max(h1, h2)
    hdr = open("cdna_kernels/" + NAME[:-7] + ".s.ref").read().split("; Override launch")[0] if not cfg.ts else ""
    if cfg.ts: launch = f"; @launch kernel={NAME} grid=(256,1,1) block=(512,1,1) lds=163840\n"
    else: launch = "; @launch grid=(256,1,1) block=(512,1,1) lds=163840\n"
    pad = ".fill 8192, 4, 0xbf800000\n"
    txt = hdr + launch + ".amdgcn_target \"amdgcn-amd-amdhsa--gfx950\"\n.text\n" + f".globl {NAME}\n.p2align 8\n.type {NAME},@function\n{NAME}:\n" + a.text() + pad
    return txt + ".section .rodata,\"a\"\n.p2align 6\n" + kernel_desc(NAME, hi)

if __name__ == "__main__":
    print(build_fused(Cfg(**eval(sys.argv[1] if len(sys.argv) > 1 else "{}"))))
```
